```python
import torch

def _softmax(x, axis=-1):
    return torch.softmax(x, dim=axis)
def _gelu(x):
    return torch.nn.functional.gelu(x, approximate="tanh")
def _silu(x):
    return torch.nn.functional.silu(x)
def _sigmoid(x):
    return torch.sigmoid(x)
def _layernorm(x, axis=-1, eps=1e-5):
    m = x.mean(dim=axis, keepdim=True)
    v = x.var(dim=axis, keepdim=True, unbiased=False)
    return (x - m) / torch.sqrt(v + eps)
def _scatter_add(tgt, idx, src, axis=0):
    return tgt.clone().index_add_(axis, idx, src)
def _segment_sum(src, seg, n):
    out = torch.zeros((n,) + src.shape[1:], dtype=src.dtype)
    return out.index_add_(0, seg, src)
def _pad(x, pw):
    flat = tuple(v for pair in reversed(pw) for v in pair)
    return torch.nn.functional.pad(x, flat)

kernel_name = 'concat_heads__softmax_full_mha__ssm_conv_s5__prompt'

def setup_inputs():

    _w = (lambda a: (lambda t: t.to(torch.bfloat16) if t.is_floating_point() else t)(torch.as_tensor(a)))
    def _A_setup():
        B, S, D = 1, 2048, 576
        return {
            "x": _w((lambda *s: torch.randn(*s, dtype=torch.bfloat16) * 0.2)(B, S, D)),
            "wqkv": _w((lambda *s: torch.randn(*s, dtype=torch.bfloat16) * 0.2)(D, 3 * D)),
            "wo": _w((lambda *s: torch.randn(*s, dtype=torch.bfloat16) * 0.05)(D, D)),
        }
    _A_in = _A_setup()

    def _B_setup():
        B, S, D = 1, 2048, 576
        P = D
        Lambda_re = -0.5 * (lambda _x: torch.exp(torch.as_tensor(_x)))((lambda *s: torch.randn(*s, dtype=torch.bfloat16) * 0.8)(P))
        Lambda_im = (lambda *s: torch.randn(*s, dtype=torch.bfloat16) * 0.8)(P) * 1.0
        B_re = (lambda *s: torch.randn(*s, dtype=torch.bfloat16) * 0.8)(P, D) * (D ** -0.5)
        B_im = (lambda *s: torch.randn(*s, dtype=torch.bfloat16) * 0.8)(P, D) * (D ** -0.5)
        C_re = (lambda *s: torch.randn(*s, dtype=torch.bfloat16) * 0.8)(D, P) * (P ** -0.5)
        C_im = (lambda *s: torch.randn(*s, dtype=torch.bfloat16) * 0.8)(D, P) * (P ** -0.5)
        log_dt = (lambda *s: torch.randn(*s, dtype=torch.bfloat16) * 0.8)(P) * 0.3 - 2.0
        Dskip = (lambda *s: torch.randn(*s, dtype=torch.bfloat16) * 0.8)(D)
        return {
            "x": _w((lambda *s: torch.randn(*s, dtype=torch.bfloat16) * 0.05)(B, S, D)),
            "Lambda_re": _w(Lambda_re),
            "Lambda_im": _w(Lambda_im),
            "B_re": _w(B_re),
            "B_im": _w(B_im),
            "C_re": _w(C_re),
            "C_im": _w(C_im),
            "log_dt": _w(log_dt),
            "Dskip": _w(Dskip),
        }
    _B_in = _B_setup()

    return {
        "A_x": _A_in["x"],
        "A_wqkv": _A_in["wqkv"],
        "A_wo": _A_in["wo"],
        "B_x": _B_in["x"],
        "B_Lambda_re": _B_in["Lambda_re"],
        "B_Lambda_im": _B_in["Lambda_im"],
        "B_B_re": _B_in["B_re"],
        "B_B_im": _B_in["B_im"],
        "B_C_re": _B_in["C_re"],
        "B_C_im": _B_in["C_im"],
        "B_log_dt": _B_in["log_dt"],
        "B_Dskip": _B_in["Dskip"],
    }

def reference(A_x, A_wqkv, A_wo, B_x, B_Lambda_re, B_Lambda_im, B_B_re, B_B_im, B_C_re, B_C_im, B_log_dt, B_Dskip):
    def _A_ref(x, wqkv, wo):
        B, S, D = x.shape
        H = 32; Dh = D // H
        qkv = (lambda x, *d: x.permute(*d))((x @ wqkv).reshape(B, S, 3, H, Dh), 2, 0, 3, 1, 4)
        q, k, v = qkv[0], qkv[1], qkv[2]
        scale = Dh ** -0.5
        scores = torch.einsum("bhqd,bhkd->bhqk", q, k) * scale
        p = _softmax(scores, axis=-1)
        o = torch.einsum("bhqk,bhkd->bhqd", p, v)
        return (lambda x, *d: x.permute(*d))(o, 0, 2, 1, 3).reshape(B, S, D) @ wo

    def _B_ref(x, Lambda_re, Lambda_im, B_re, B_im, C_re, C_im, log_dt, Dskip):
        Bsz, L, H = x.shape
        Lam = Lambda_re + 1j * Lambda_im
        Bmat = B_re + 1j * B_im
        Cmat = C_re + 1j * C_im
        dt = torch.exp(log_dt)
        Lam_bar = torch.exp(dt * Lam)
        B_bar = ((Lam_bar - 1.0) / Lam)[:, None] * Bmat
        Bu = torch.einsum("bld,pd->blp", x + 0j, B_bar)
        h = torch.zeros_like(Bu[:, 0, :])
        hs = []
        for t in range(L):
            h = Lam_bar[None, :] * h + Bu[:, t, :]
            hs.append(h)
        hseq = torch.stack(hs, 1)
        y = 2.0 * torch.einsum("blp,dp->bld", hseq, Cmat).real + x * Dskip[None, None, :]
        return y

    a = _A_ref(A_x, A_wqkv, A_wo)
    b = _B_ref(B_x, B_Lambda_re, B_Lambda_im, B_B_re, B_B_im, B_C_re, B_C_im, B_log_dt, B_Dskip)
    return torch.concatenate([a, b], axis=-1)
```

```python
class A:
    def __init__(self):
        self.l = []
        self.uid = 0
    def __call__(self, s):
        for x in s.strip("\n").split("\n"):
            x = x.strip()
            if not x: continue
            if x.endswith(":") or x.startswith("."):
                self.l.append(x)
            else:
                self.l.append("    " + x)
    def lab(self, p="L"):
        self.uid += 1
        return f"{p}_{self.uid}"
    def text(self):
        return "\n".join(self.l) + "\n"

def vr(a, n):
    return f"v[{a}:{a+n-1}]" if n > 1 else f"v{a}"
def sr(a, n):
    return f"s[{a}:{a+n-1}]" if n > 1 else f"s{a}"
def srd(a, d, base, nbytes):
    a(f"""s_mov_b32 s{d}, s{base}
    s_mov_b32 s{d+1}, s{base+1}
    s_mov_b32 s{d+2}, {nbytes}
    s_mov_b32 s{d+3}, 0x00020000""")
def kdesc(name, vgpr, sgpr=96):
    acc = (vgpr + 3) // 4 * 4
    return f""".p2align 6
.amdhsa_kernel {name}
  .amdhsa_next_free_vgpr {vgpr}
  .amdhsa_next_free_sgpr {sgpr}
  .amdhsa_accum_offset {acc}
  .amdhsa_group_segment_fixed_size 0
  .amdhsa_kernarg_size 120
  .amdhsa_user_sgpr_count 2
  .amdhsa_user_sgpr_kernarg_segment_ptr 1
  .amdhsa_system_sgpr_workgroup_id_x 1
.end_amdhsa_kernel
"""
def khead(a, name):
    a(f""".globl {name}
.p2align 8
.type {name},@function
{name}:""")
```

```python
from asm import *
from gemm import *

LDS_KM = 65536
LDS_V = 81920
LDS_K2 = 163840
S0 = 32; OA = 96; P0 = 128; QM = 144; QL = 152; KM = 156; KL = 164; VB = 168
VAK = 10; VAL = 11; VAV = 12
GROUPS = [8, 16, 40]

def mf16(d, x, y, c): return f"v_mfma_f32_32x32x16_bf16 {vr(d,16)}, {vr(x,4)}, {vr(y,4)}, {c}"

def gen_k2(a, name):
    khead(a, name)
    a("""s_load_dwordx4 s[4:7], s[0:1], 32
    s_load_dwordx2 s[8:9], s[0:1], 80
    s_load_dwordx2 s[16:17], s[0:1], 112""")
    wave_id(a)
    a(f"""s_cmp_ge_u32 s2, 256
    s_cbranch_scc1 {name}_exit
    s_and_b32 s18, s2, 7
    s_lshr_b32 s19, s2, 3
    s_lshl_b32 s20, s18, 2
    s_lshr_b32 s21, s19, 3
    s_add_u32 s20, s20, s21
    s_and_b32 s21, s19, 7
    v_and_b32 v1, 63, v0
    v_and_b32 v2, 31, v0
    v_bfe_u32 v3, v0, 5, 1
    s_lshr_b32 s22, s20, 1
    s_mul_i32 s22, s22, {PAIR_STRIDE}
    s_and_b32 s23, s20, 1
    s_waitcnt lgkmcnt(0)""")
    srd(a, 40, 16, WS_USED)
    a(f"s_cmp_ge_u32 s3, 4\ns_cbranch_scc1 {name}_help")
    a("s_setprio 2")
    a(f"""s_lshl_b32 s24, s21, 3
    s_lshl_b32 s25, s3, 1
    s_add_u32 s24, s24, s25
    s_mul_i32 s25, s24, 2304
    s_add_u32 s25, s25, s22
    s_lshl_b32 s26, s23, 10
    s_add_u32 s26, s26, s25
    v_lshlrev_b32 v{VAK}, 4, v1
    v_mul_u32_u24 v4, 2304, v3
    v_lshl_add_u32 v4, v2, 3, v4
    buffer_load_dwordx4 {vr(QM,4)}, v{VAK}, s[40:43], s26 offen
    buffer_load_dwordx4 {vr(QM+4,4)}, v{VAK}, s[40:43], s26 offen offset:2304
    buffer_load_dwordx2 {vr(QL,2)}, v4, s[40:43], s25 offen offset:2048
    v_lshlrev_b32 v{VAL}, 3, v2
    v_add_u32 v{VAL}, {LDS_KM}, v{VAL}""")
    a(f"""v_min_u32 v4, 18, v2
    v_add_u32 v5, -20, v2
    v_cmp_gt_u32 vcc, 8, v5
    s_nop 1
    v_cndmask_b32 v4, v4, 0, vcc
    v_mul_u32_u24 v5, 304, v3
    v_lshl_add_u32 v{VAV}, v4, 4, v5
    v_add_u32 v{VAV}, {LDS_V}, v{VAV}""")
    for i in range(32): a(f"v_mov_b32 v{OA+i}, 0")
    for i in range(4): a(f"v_mov_b32 v{P0+12+i}, 0")
    for i in range(4): a(f"v_mov_b32 v{VB+8+4+i}, 0")
    a(f"""s_lshl_b32 s27, s20, 16
    s_lshl_b32 s28, s24, 9
    s_add_u32 s27, s27, s28
    s_add_u32 s27, s27, {OF_OFF}
    s_lshr_b32 s29, s20, 2
    s_lshl_b32 s29, s29, 15
    s_add_u32 s28, s28, s29
    s_and_b32 s29, s20, 3
    s_lshl_b32 s29, s29, 2
    s_add_u32 s28, s28, s29
    s_add_u32 s28, s28, {OF_OFF + 64*32768}
    v_lshlrev_b32 v13, 15, v3
    v_lshl_add_u32 v13, v2, 4, v13
    v_lshlrev_b32 v14, 30, v3
    v_lshl_add_u32 v14, v2, 4, v14
    s_waitcnt vmcnt(0)
    s_cmp_eq_u32 s23, 0
    s_cselect_b32 s30, -1, 0
    s_cselect_b32 s31, 0, -1
    v_and_b32 v{QL}, s30, v{QL}
    v_and_b32 v{QL+1}, s31, v{QL+1}
    s_mov_b32 s32, 0
    s_barrier""")
    def rdK(t, buf): return f"ds_read_b128 {vr(KM+4*buf,4)}, v{VAK} offset:{1024*t}"
    def rdL(t, buf): return f"ds_read_b64 {vr(KL+2*buf,2)}, v{VAL} offset:{256*t}"
    def rdV(t, m, buf): return f"ds_read_b128 {vr(VB+8*buf+4*m,4)}, v{VAV} offset:{1216*t+608*m}"
    def qk_a(buf): return mf16(S0+32*buf, KM+4*buf, QM, "0")
    def qk_b(buf): return mf16(S0+32*buf+16, KM+4*buf, QM+4, "0")
    def qk_l(buf): return f"v_mfma_f32_32x32x4_2b_bf16 {vr(S0+32*buf,32)}, {vr(KL+2*buf,2)}, {vr(QL,2)}, {vr(S0+32*buf,32)}"
    def pv(q, m, buf): return mf16(OA+16*q, VB+8*buf+4*m, P0+8*q+4*m, vr(OA+16*q,16))
    def H(k, buf):
        b = S0 + 32*buf + 4*k
        for i in range(4): a(f"v_exp_f32 v{b+i}, v{b+i}")
        a(f"v_cvt_pk_bf16_f32 v{P0+2*k}, v{b}, v{b+1}\nv_cvt_pk_bf16_f32 v{P0+2*k+1}, v{b+2}, v{b+3}")
    a(rdK(0, 0)); a(rdL(0, 0)); a(rdK(1, 1)); a(rdL(1, 1)); a(rdV(0, 0, 0)); a(rdV(0, 1, 0))
    a("s_waitcnt lgkmcnt(4)")
    a(qk_a(0)); a(qk_b(0)); a("s_nop 9"); a(qk_l(0)); a("s_nop 15\ns_nop 3")
    loop = f"{name}_loop"
    a(f".p2align 6\n{loop}:")
    barmask = 0; t0 = 0
    for g in GROUPS[:-1]:
        t0 += g; barmask |= 1 << (t0 // 8 - 1)
    for j in range(8):
        b = j & 1; nb = b ^ 1
        H(0, b); a(pv(1, 1, nb)); a("s_waitcnt lgkmcnt(0)")
        H(1, b); a(qk_a(nb)); a(rdV(j+1, 0, nb))
        H(2, b); a(qk_b(nb)); a(rdV(j+1, 1, nb))
        H(3, b); a(pv(0, 0, b)); a(rdK(j+2, b))
        H(4, b); a(qk_l(nb))
        H(5, b)
        H(6, b); a(pv(0, 1, b)); a(rdL(j+2, b))
        H(7, b); a(pv(1, 0, b))
        if j == 4:
            a(f"s_bitcmp1_b32 {barmask}, s32")
        if j == 5:
            a(f"s_cbranch_scc0 {name}_nobar\ns_barrier\n{name}_nobar:")
        if j == 6:
            a("s_add_u32 s32, s32, 1")
        if j == 7:
            a("s_cmp_lt_u32 s32, 8")
            a(f"v_add_u32 v{VAK}, 8192, v{VAK}\nv_add_u32 v{VAL}, 2048, v{VAL}\nv_add_u32 v{VAV}, {8*1216}, v{VAV}")
            a(f"s_cbranch_scc1 {loop}")
    a(pv(1, 1, 1))
    a("s_mov_b32 s33, 0")
    a(f"{name}_fin:")
    a("s_nop 15\ns_nop 3\nv_cmp_eq_u32 vcc, 0, v3\ns_nop 1")
    for q in range(2):
        a(f"v_cndmask_b32 v{4+q}, v{OA+16*q+12}, v{OA+16*q+10}, vcc")
    a(f"s_cmp_lg_u32 s33, 0\ns_cbranch_scc1 {name}_store")
    a(f"v_min_f32 v6, v4, v5\nv_max_f32 v7, v4, v5")
    for q in range(2):
        o = OA + 16*q
        for i in range(0, 10, 2):
            a(f"v_max3_f32 v7, abs(v{o+i}), abs(v{o+i+1}), v7")
    a(f"""v_add_f32 v8, v4, v5
    v_cmp_le_f32 vcc, {hex(f2u(2.0**-60))}, v6
    s_mov_b64 s[34:35], vcc
    v_cmp_ge_f32 vcc, {hex(f2u(2.0**60))}, v8
    s_and_b64 s[34:35], s[34:35], vcc
    v_cmp_ge_f32 vcc, {hex(f2u(2.0**120))}, v7
    s_and_b64 s[34:35], s[34:35], vcc""")
    for q in range(2):
        o = OA + 16*q
        for i in range(0, 10, 2):
            a(f"v_cmp_o_f32 vcc, v{o+i}, v{o+i+1}\ns_and_b64 s[34:35], s[34:35], vcc")
    a(f"s_cmp_eq_u64 s[34:35], exec\ns_cbranch_scc0 {name}_slow")
    a(f"{name}_store:")
    for q in range(2):
        o = OA + 16*q
        a(f"v_rcp_f32 v{4+q}, v{4+q}\ns_nop 0")
        for i in range(10): a(f"v_mul_f32 v{o+i}, v{o+i}, v{4+q}")
        for i in range(5): a(f"v_cvt_pk_bf16_f32 v{P0+8*q+i}, v{o+2*i}, v{o+2*i+1}")
        a(f"buffer_store_dwordx4 {vr(P0+8*q,4)}, v13, s[40:43], s27 offen offset:{512*q}")
        a(f"buffer_store_dword v{P0+8*q+4}, v14, s[40:43], s28 offen offset:{512*q}")
    a("s_endpgm")
    a(f"{name}_slow:")
    def reset():
        a(f"v_subrev_u32 v{VAK}, 65536, v{VAK}\nv_subrev_u32 v{VAL}, 16384, v{VAL}\ns_mov_b32 s32, 0")
    def qk_plain():
        a(rdK(0, 0)); a(rdL(0, 0)); a("s_waitcnt lgkmcnt(0)")
        a(qk_a(0)); a(qk_b(0)); a("s_nop 9"); a(qk_l(0)); a("s_nop 15\ns_nop 3")
    reset()
    a("v_mov_b32 v6, 0xff800000\nv_mov_b32 v7, 0xff800000")
    a(f"{name}_slowa:")
    qk_plain()
    for q in range(2):
        for i in range(0, 16, 2):
            a(f"v_max3_f32 v{6+q}, v{S0+16*q+i}, v{S0+16*q+i+1}, v{6+q}")
    a(f"""v_add_u32 v{VAK}, 1024, v{VAK}
    v_add_u32 v{VAL}, 256, v{VAL}
    s_add_u32 s32, s32, 1
    s_cmp_lt_u32 s32, 64
    s_cbranch_scc1 {name}_slowa
    v_xor_b32 v8, 32, v1
    v_lshlrev_b32 v8, 2, v8
    ds_bpermute_b32 v4, v8, v6
    ds_bpermute_b32 v5, v8, v7
    s_waitcnt lgkmcnt(0)
    v_max_f32 v6, v6, v4
    v_max_f32 v7, v7, v5""")
    reset()
    a(f"v_subrev_u32 v{VAV}, {64*1216}, v{VAV}")
    for i in range(32): a(f"v_mov_b32 v{OA+i}, 0")
    a(f"{name}_slowb:")
    a(rdV(0, 0, 0)); a(rdV(0, 1, 0))
    qk_plain()
    for q in range(2):
        for i in range(16): a(f"v_sub_f32 v{S0+16*q+i}, v{S0+16*q+i}, v{6+q}")
    for k in range(8): H(k, 0)
    a("s_nop 1")
    for q in range(2):
        for m in range(2): a(pv(q, m, 0))
    a(f"""v_add_u32 v{VAK}, 1024, v{VAK}
    v_add_u32 v{VAL}, 256, v{VAL}
    v_add_u32 v{VAV}, 1216, v{VAV}
    s_nop 7
    s_add_u32 s32, s32, 1
    s_cmp_lt_u32 s32, 64
    s_cbranch_scc1 {name}_slowb
    s_mov_b32 s33, 1
    s_branch {name}_fin""")
    a(f"{name}_help:")
    a("s_sub_u32 s24, s3, 4")
    a(f"""v_lshlrev_b32 v10, 4, v1
    v_lshrrev_b32 v11, 4, v1
    v_mul_u32_u24 v11, 2304, v11
    v_and_b32 v12, 15, v1
    v_lshl_add_u32 v11, v12, 4, v11
    s_add_u32 s25, s22, {KP_OFF}
    s_lshl_b32 s26, s23, 10
    s_add_u32 s26, s26, s25
    s_mul_i32 s27, s24, 2304
    s_add_u32 s26, s26, s27
    s_add_u32 s25, s25, 2048
    s_mul_i32 s27, s24, {4*2304}
    s_add_u32 s25, s25, s27
    s_mul_i32 s27, s20, {VH_STRIDE}
    s_add_u32 s27, s27, {VF_OFF}
    s_lshl_b32 s28, s24, 10
    s_add_u32 s27, s27, s28""")
    def dma(vo, sbase, soff, lds):
        a(f"s_add_u32 s29, {sbase}, {soff}\ns_add_u32 m0, s28, {lds}\ns_nop 0\nbuffer_load_dwordx4 v{vo}, s[40:43], s29 offen lds")
    cnt = []
    kdone = 0; mdone = 0; vdone = 0; tend = 0
    groups = []
    for g in GROUPS:
        tend += g
        lst = []
        kn = tend // 4
        mn = -(-tend // 16)
        vn = -(-(tend * 1216) // 4096)
        for i in range(mdone, mn): lst.append((11, "s25", i*16*2304, LDS_KM + i*4096))
        ks = [(10, "s26", i*4*2304, i*4096) for i in range(kdone, kn)]
        vs = [(10, "s27", i*4096, LDS_V + i*4096) for i in range(vdone, vn)]
        while ks or vs:
            if ks: lst.append(ks.pop(0))
            if vs: lst.append(vs.pop(0))
        kdone, mdone, vdone = kn, mn, vn
        groups.append(lst)
    assert vdone == 19 and kdone == 16 and mdone == 4
    for x in groups[0]: dma(*x)
    for x in groups[1]: dma(*x)
    a(f"s_waitcnt vmcnt({len(groups[1])})\ns_barrier")
    for x in groups[2]: dma(*x)
    a(f"s_waitcnt vmcnt({len(groups[2])})\ns_barrier")
    a(f"s_waitcnt vmcnt(0)\ns_barrier")
    gen_scan(a, name)
    a(f"{name}_exit:\ns_endpgm")

def gen_scan(a, name):
    a(f"""s_lshl_b32 s25, s24, 5
    s_add_u32 s25, s25, s19
    s_cmp_ge_u32 s25, 72
    s_cbranch_scc1 {name}_exit
    s_mul_i32 s26, s18, 72
    s_add_u32 s25, s25, s26""")
    srd(a, 44, 4, 1152); srd(a, 48, 6, 1152); srd(a, 52, 8, 1152)
    UR = 32
    XR = 64
    XI = 96
    a(f"""s_lshl_b32 s26, s25, 1
    v_mov_b32 v4, s26
    buffer_load_ushort v5, v4, s[44:47], 0 offen
    buffer_load_ushort v6, v4, s[48:51], 0 offen
    buffer_load_ushort v7, v4, s[52:55], 0 offen
    s_mov_b32 s27, 73728
    v_mul_lo_u32 v8, v1, s27
    s_lshl_b32 s27, s25, 4
    s_add_u32 s27, s27, {UF_OFF}""")
    for q in range(8):
        a(f"s_add_u32 s28, s27, {9216*q}\nbuffer_load_dwordx4 {vr(UR+4*q,4)}, v8, s[40:43], s28 offen")
    LOG2E = 1.4426950408889634
    a(f"""s_waitcnt vmcnt(8)
    v_lshlrev_b32 v5, 16, v5
    v_lshlrev_b32 v6, 16, v6
    v_lshlrev_b32 v7, 16, v7
    v_mul_f32 v7, {hex(f2u(LOG2E))}, v7
    v_exp_f32 v7, v7
    s_nop 0
    v_cvt_pk_bf16_f32 v7, v7, v7
    v_and_b32 v7, 0xffff0000, v7
    v_mul_f32 v9, v7, v5
    v_mul_f32 v10, v7, v6
    v_mul_f32 v9, {hex(f2u(LOG2E))}, v9
    v_exp_f32 v9, v9
    v_mul_f32 v10, 0.15915494309189535, v10
    v_fract_f32 v10, v10
    v_cos_f32 v11, v10
    v_sin_f32 v12, v10
    s_nop 0
    v_mul_f32 v14, v9, v11
    v_mul_f32 v16, v9, v12
    v_add_f32 v11, -1.0, v14
    v_mul_f32 v9, v5, v5
    v_fma_f32 v9, v6, v6, v9
    v_rcp_f32 v9, v9
    v_mul_f32 v18, v11, v5
    v_fma_f32 v18, v16, v6, v18
    v_mul_f32 v20, v16, v5
    v_fma_f32 v20, -v11, v6, v20
    v_add_f32 v9, v9, v9
    v_mul_f32 v18, v18, v9
    v_mul_f32 v20, v20, v9
    v_sub_f32 v16, 0, v16
    v_mov_b32 v15, v14
    v_mov_b32 v17, v16
    v_mov_b32 v19, v18
    v_mov_b32 v21, v20""")
    def csq(dr, di, sr_, si):
        a(f"""v_mul_f32 v9, v{si}, v{si}
        v_mul_f32 v{di}, v{sr_}, v{si}
        v_fma_f32 v{dr}, v{sr_}, v{sr_}, -v9
        v_add_f32 v{di}, v{di}, v{di}""")
    csq(22, 23, 14, 16)
    for _ in range(3): csq(22, 23, 22, 23)
    a("s_waitcnt vmcnt(0)")
    def pk(op, d, x, y, z=None, neg=""):
        if z is None: a(f"v_pk_mul_f32 {vr(d,2)}, {vr(x,2)}, {vr(y,2)} {neg}")
        else: a(f"v_pk_fma_f32 {vr(d,2)}, {vr(x,2)}, {vr(y,2)}, {vr(z,2)} {neg}")
    NEG0 = "neg_lo:[1,0,0] neg_hi:[1,0,0]"
    for D in range(16):
        a(f"""v_lshlrev_b32 v24, 16, v{UR+D}
        v_and_b32 v25, 0xffff0000, v{UR+D}
        v_lshlrev_b32 v26, 16, v{UR+16+D}
        v_and_b32 v27, 0xffff0000, v{UR+16+D}""")
        pk("m", XR+2*D, 18, 24)
        pk("m", XI+2*D, 18, 26, None, "neg_lo:[1,0] neg_hi:[1,0]")
        pk("f", XR+2*D, 20, 26, XR+2*D, NEG0)
        pk("f", XI+2*D, 20, 24, XI+2*D, NEG0)
    def step(er, ei, nr, ni, D):
        pk("f", nr, 14, er, XR+2*D)
        pk("f", ni, 14, ei, XI+2*D)
        pk("f", nr, 16, ei, nr, NEG0)
        pk("f", ni, 16, er, ni)
    cur = (XR, XI)
    for D in range(1, 16):
        nx = (24, 26) if D & 1 else (28, 30)
        step(cur[0], cur[1], nx[0], nx[1], D); cur = nx
    assert cur == (24, 26)
    def cmac(dr, di, pr, pi, xr, xi, ar, ai):
        a(f"""v_fma_f32 v{dr}, v{pr}, v{xr}, v{ar}
        v_fma_f32 v{di}, v{pr}, v{xi}, v{ai}
        v_fma_f32 v{dr}, -v{pi}, v{xi}, v{dr}
        v_fma_f32 v{di}, v{pi}, v{xr}, v{di}""")
    cmac(28, 29, 22, 23, 24, 26, 25, 27)
    csq(10, 11, 22, 23)
    for k in range(6):
        a(f"""v_subrev_u32 v12, {1<<k}, v1
        v_lshlrev_b32 v12, 2, v12
        v_cmp_le_u32 vcc, {1<<k}, v1
        ds_bpermute_b32 v30, v12, v28
        ds_bpermute_b32 v31, v12, v29
        s_waitcnt lgkmcnt(0)
        v_cndmask_b32 v30, 0, v30, vcc
        v_cndmask_b32 v31, 0, v31, vcc""")
        cmac(28, 29, 10, 11, 30, 31, 28, 29)
        if k < 5: csq(10, 11, 10, 11)
    a(f"""v_subrev_u32 v12, 1, v1
    v_lshlrev_b32 v12, 2, v12
    v_cmp_le_u32 vcc, 1, v1
    ds_bpermute_b32 v30, v12, v28
    ds_bpermute_b32 v31, v12, v29
    s_waitcnt lgkmcnt(0)
    v_cndmask_b32 v28, 0, v30, vcc
    v_cndmask_b32 v30, 0, v31, vcc""")
    cmac(29, 31, 22, 23, 28, 30, 24, 26)
    cur = (28, 30)
    for D in range(16):
        step(cur[0], cur[1], XR+2*D, XI+2*D, D); cur = (XR+2*D, XI+2*D)
        a(f"v_cvt_pk_bf16_f32 v{UR+D}, v{XR+2*D}, v{XR+2*D+1}\nv_cvt_pk_bf16_f32 v{UR+16+D}, v{XI+2*D}, v{XI+2*D+1}")
    a(f"""v_lshlrev_b32 v8, 6, v1
    s_lshl_b32 s27, s25, 12
    s_add_u32 s27, s27, {HT_OFF}
    s_add_u32 s28, s27, {576*4096}""")
    for q in range(4): a(f"buffer_store_dwordx4 {vr(UR+4*q,4)}, v8, s[40:43], s27 offen offset:{16*q}")
    for q in range(4): a(f"buffer_store_dwordx4 {vr(UR+16+4*q,4)}, v8, s[40:43], s28 offen offset:{16*q}")
```

```python
from asm import *

QP_OFF = 0
PAIR_STRIDE = 64 * 2304
KP_OFF = 16 * PAIR_STRIDE
VF_OFF = 32 * PAIR_STRIDE
VH_STRIDE = 64 * 1216
OF_OFF = VF_OFF + 32 * VH_STRIDE
UF_OFF = OF_OFF + 72 * 2048 * 16
HT_OFF = UF_OFF + 64 * 73728
WS_USED = HT_OFF + 2 * 576 * 4096
OOB = 0x40000000
SLOT = 40960
QSCALE = (18 ** -0.5) * 1.4426950408889634

import struct
def f2u(x): return struct.unpack("<I", struct.pack("<f", x))[0]

ACC = 32
FR0 = 128
ADR = 8
EPI = 168

def loader(a, rotate, alt):
    def issue(i):
        slot = (i % 4) * SLOT
        a("s_mul_i32 s48, s54, s50\ns_mul_i32 s49, s54, s51")
        for n in range(4):
            a(f"s_add_u32 m0, s52, {slot + n*1024}\ns_nop 0\nbuffer_load_dwordx4 v{10+n}, s[40:43], s48 offen lds")
        for n in range(6):
            if alt and i == 8:
                a(f"s_add_u32 m0, s53, {slot + n*1024}\ns_nop 0\nbuffer_load_dwordx4 v{20+n}, s[44:47], 0 offen lds")
            else:
                a(f"s_add_u32 m0, s53, {slot + n*1024}\ns_nop 0\nbuffer_load_dwordx4 v{14+n}, s[44:47], s49 offen lds")
        a("s_add_u32 s54, s54, 1")
        if rotate:
            a("s_cmp_eq_u32 s54, 9\ns_cselect_b32 s54, 0, s54")
    issued = 0
    issue(0); issue(1); issued = 2
    for i in range(9):
        a(f"s_waitcnt vmcnt({10*(issued-1-i)})\ns_barrier")
        tgt = min(9, i + 4)
        while issued < tgt:
            issue(issued); issued += 1
    a("s_endpgm")

def compute_loop(a, nadr, reads, mfmas):
    a(f"s_mov_b32 s60, 0\ns_mov_b32 s61, 0\ns_mov_b32 s64, {SLOT}\ns_mov_b32 s65, {(-3*SLOT) & 0xffffffff}\ns_barrier")
    for r in reads(0, 0): a(r)
    loop = a.lab("L_gl"); last = a.lab("L_gl_last"); done = a.lab("L_gl_done")
    a(f"{loop}:")
    def interleave(ms, rs, pre=0):
        n = len(ms)
        per = -(-len(rs) // max(1, n - 2)) if n > 3 else -(-len(rs) // max(1, n - 1))
        k = 0
        for m in ms:
            a(m)
            for x in rs[k:k+per]: a(x)
            k += per
        for x in rs[k:]: a(x)
    for s in range(3):
        a("s_waitcnt lgkmcnt(0)")
        interleave(mfmas(s & 1), reads(s + 1, (s + 1) & 1))
    a("s_waitcnt lgkmcnt(0)")
    a(f"s_cmp_eq_u32 s60, 8\ns_cbranch_scc1 {last}")
    ms = mfmas(1)
    a(ms[0])
    a(f"""s_add_u32 s61, s61, 1
    s_cmp_eq_u32 s61, 4
    s_cselect_b32 s62, s65, s64
    s_cselect_b32 s61, 0, s61
    s_barrier""")
    for k in range(nadr): a(f"v_add_u32 v{ADR+k}, s62, v{ADR+k}")
    interleave(ms[1:], reads(0, 0))
    a(f"s_add_u32 s60, s60, 1\ns_branch {loop}")
    a(f"{last}:")
    for m in ms: a(m)
    a("s_nop 15\ns_nop 3")

def frag(buf, k): return FR0 + 20 * buf + 4 * k
def mf(d, x, y): return f"v_mfma_f32_32x32x16_bf16 {vr(d,16)}, {vr(x,4)}, {vr(y,4)}, {vr(d,16)}"
def acc(mt, c): return ACC + 16 * (3 * mt + c)

def lane_common(a):
    a("""v_and_b32 v1, 63, v0
    v_and_b32 v2, 31, v0
    v_bfe_u32 v3, v0, 5, 1
    v_bfe_u32 v4, v0, 2, 2
    v_bfe_u32 v5, v0, 4, 1
    v_lshlrev_b32 v5, 5, v5
    v_and_b32 v6, 3, v0
    v_lshl_add_u32 v5, v6, 3, v5
    v_bfe_u32 v6, v0, 3, 1
    v_bfe_u32 v7, v0, 1, 3""")

def adr_kc(a, dst, sbase):
    a(f"v_lshlrev_b32 v30, 7, v2\nv_add_u32 v30, {sbase}, v30")
    for s in range(4):
        a(f"v_or_b32 v31, {2*s}, v3\nv_xor_b32 v31, v31, v7\nv_lshl_add_u32 v{dst+s}, v31, 4, v30")

def adr_w(a, dst, s_wn3):
    a("v_lshl_add_u32 v30, v3, 3, v4\nv_mul_u32_u24 v30, 384, v30\nv_add_u32 v30, v30, v5")
    for c in range(3):
        a(f"s_add_u32 s63, {s_wn3}, {c}\nv_xor_b32 v31, s63, v6\nv_lshl_add_u32 v{dst+c}, v31, 6, v30")

def zero_acc(a, n):
    for i in range(n): a(f"v_mov_b32 v{ACC+i}, 0")

def rd128(dst, adr, off): return f"ds_read_b128 {vr(dst,4)}, v{adr} offset:{off}"
def rdtr(dst, adr, off): return f"ds_read_b64_tr_b16 {vr(dst,2)}, v{adr} offset:{off}"

def reads_w(s, buf, adr0):
    out = []
    for c in range(3):
        for e in range(2):
            out.append(rdtr(frag(buf, 2 + c) + 2 * e, adr0 + c, 16384 + (16 * s + 4 * e) * 384))
    return out

def loader_voff_kc(a, dst, n, rowexpr, pitch=1152):
    for i in range(n):
        rowexpr(i)
        a(f"""v_mul_u32_u24 v30, {pitch}, v30
        v_lshrrev_b32 v31, 4, v1
        v_add_u32 v31, {4*(i&1)}, v31
        v_and_b32 v29, 7, v1
        v_xor_b32 v31, v31, v29
        v_lshl_add_u32 v{dst+i}, v31, 4, v30""")

def loader_voff_w(a, dst, s_lw, pitch, rowmap=None):
    a(f"s_mul_i32 s63, {s_lw}, 384")
    for n in range(6):
        a(f"""v_add_u32 v28, s63, v1
        v_add_u32 v28, {64*n}, v28
        v_mul_u32_u24 v30, 2731, v28
        v_lshrrev_b32 v30, 16, v30
        v_mul_u32_u24 v29, 24, v30
        v_sub_u32 v29, v28, v29
        v_bfe_u32 v31, v30, 1, 1
        v_lshlrev_b32 v31, 2, v31
        v_xor_b32 v29, v29, v31""")
        if rowmap: rowmap()
        a(f"v_mul_u32_u24 v30, {pitch}, v30\nv_lshl_add_u32 v{dst+n}, v29, 4, v30")

def wave_id(a):
    a("""v_lshrrev_b32 v1, 6, v0
    s_nop 0
    v_readfirstlane_b32 s3, v1""")

def gen_k1(a, name, rotate=True):
    khead(a, name)
    a("""s_load_dwordx4 s[4:7], s[0:1], 0
    s_load_dwordx2 s[8:9], s[0:1], 24
    s_load_dwordx4 s[12:15], s[0:1], 48
    s_load_dwordx2 s[16:17], s[0:1], 112""")
    wave_id(a)
    a(f"""s_cmp_ge_u32 s2, 256
    s_cbranch_scc1 {name}_exit
    s_and_b32 s20, s2, 1
    s_lshl_b32 s20, s20, 3
    s_bfe_u32 s21, s2, 0x30003
    s_add_u32 s20, s20, s21
    s_bfe_u32 s21, s2, 0x20001
    s_lshl_b32 s21, s21, 2
    s_lshr_b32 s22, s2, 6
    s_add_u32 s21, s21, s22
    s_cmp_ge_u32 s21, 15
    s_cbranch_scc1 {name}_exit""")
    lane_common(a)
    a(f"""s_waitcnt lgkmcnt(0)
    s_cmp_ge_u32 s3, 4
    s_cbranch_scc0 {name}_comp""")
    a("s_sub_u32 s23, s3, 4")
    a("s_lshl_b32 s52, s23, 12\ns_mul_i32 s53, s23, 6144\ns_add_u32 s53, s53, 16384")
    a("s_mov_b32 s50, 128")
    if rotate:
        a("s_lshr_b32 s54, s2, 3\ns_add_u32 s54, s54, s2\ns_and_b32 s54, s54, 7")
    else:
        a("s_mov_b32 s54, 0")
    a(f"s_lshl_b32 s24, s20, 7\ns_lshl_b32 s25, s23, 5\ns_add_u32 s24, s24, s25")
    a(f"s_cmp_ge_u32 s21, 9\ns_cbranch_scc1 {name}_ldu")
    srd(a, 40, 4, 2048*1152)
    srd(a, 44, 6, 576*3456)
    loader_voff_kc(a, 10, 4, lambda i: a(f"v_lshrrev_b32 v30, 3, v1\nv_add_u32 v30, s24, v30\nv_add_u32 v30, {8*i}, v30"))
    loader_voff_w(a, 14, "s23", 3456)
    a("s_mul_i32 s25, s21, 384")
    for n in range(6): a(f"v_add_u32 v{14+n}, s25, v{14+n}")
    a(f"s_mov_b32 s51, {64*3456}\ns_branch {name}_ldgo")
    a(f"{name}_ldu:")
    srd(a, 40, 8, 2048*1152)
    a("""s_cmp_ge_u32 s23, 2
    s_cselect_b32 s44, s14, s12
    s_cselect_b32 s45, s15, s13""")
    a(f"s_mov_b32 s46, {576*1152}\ns_mov_b32 s47, 0x00020000")
    def urow(i):
        a(f"""v_bfe_u32 v30, v1, 3, 1
        v_lshlrev_b32 v30, 4, v30
        v_bfe_u32 v31, v1, 5, 1
        v_lshl_add_u32 v30, v31, 3, v30
        v_bfe_u32 v31, v1, 4, 1
        v_add_u32 v30, v30, v31
        v_add_u32 v30, s24, v30
        v_add_u32 v30, {2*i}, v30""")
    loader_voff_kc(a, 10, 4, urow)
    a("s_sub_u32 s25, s21, 9\ns_mul_i32 s25, s25, 96\ns_and_b32 s26, s23, 1\ns_mul_i32 s26, s26, 48\ns_add_u32 s25, s25, s26")
    loader_voff_kc(a, 14, 6, lambda i: a(f"v_lshrrev_b32 v30, 3, v1\nv_add_u32 v30, s25, v30\nv_add_u32 v30, {8*i}, v30"))
    a("s_mov_b32 s51, 128")
    a(f"{name}_ldgo:")
    loader(a, rotate, False)
    a(f"{name}_comp:")
    srd(a, 40, 16, WS_USED)
    a("s_and_b32 s24, s3, 1\ns_lshr_b32 s25, s3, 1")
    a("s_lshl_b32 s26, s24, 13")
    adr_kc(a, ADR, "s26")
    zero_acc(a, 96)
    a("s_lshl_b32 s27, s20, 2\ns_lshl_b32 s28, s24, 1\ns_add_u32 s27, s27, s28")
    a(f"s_cmp_ge_u32 s21, 9\ns_cbranch_scc1 {name}_cu")
    a("s_mul_i32 s29, s25, 3")
    adr_w(a, ADR + 4, "s29")
    def reads_xw(s, buf):
        return [rd128(frag(buf, 0), ADR + s, 0)] + reads_w(s, buf, ADR + 4)[:2] + [rd128(frag(buf, 1), ADR + s, 4096)] + reads_w(s, buf, ADR + 4)[2:]
    a(f"s_cmp_ge_u32 s21, 6\ns_cbranch_scc1 {name}_cv")
    a("s_mul_i32 s30, s21, 48\ns_mul_i32 s31, s25, 24\ns_add_u32 s30, s30, s31")
    a(f"s_mov_b32 s32, {PAIR_STRIDE}")
    for c in range(3):
        for g in range(4):
            d = EPI + 4 * c + g
            a(f"""v_add_u32 v28, s30, v3
            v_add_u32 v28, {8*c+2*g}, v28
            v_mul_u32_u24 v29, 57, v28
            v_lshrrev_b32 v29, 9, v29
            v_mul_u32_u24 v30, 9, v29
            v_sub_u32 v30, v28, v30
            v_mul_lo_u32 v29, v29, s32
            v_cmp_lt_u32 vcc, 4, v30
            s_nop 1
            v_subbrev_co_u32 v31, vcc, 0, v30, vcc
            v_lshrrev_b32 v28, 1, v31
            v_lshlrev_b32 v28, 9, v28
            v_and_b32 v31, 1, v31
            v_lshl_add_u32 v28, v31, 3, v28
            v_lshl_add_u32 v28, v2, 4, v28
            v_lshlrev_b32 v31, 3, v2
            v_add_u32 v31, 2048, v31
            v_cmp_eq_u32 vcc, 4, v30
            s_nop 1
            v_cndmask_b32 v28, v28, v31, vcc
            v_add_u32 v{d}, v28, v29""")
    compute_loop(a, 7, reads_xw, lambda buf: [mf(acc(mt, c), frag(buf, 2 + c), frag(buf, mt)) for c in range(3) for mt in range(2)])
    a(f"s_cmp_lt_u32 s21, 3\ns_cselect_b32 s33, {f2u(QSCALE)}, 1.0\ns_mul_i32 s34, s27, 2304")
    t = 0
    for mt in range(2):
        for c in range(3):
            for g in range(4):
                r = acc(mt, c) + 4 * g
                o = FR0 + 2 * (t % 16); t += 1
                for i in range(4): a(f"v_mul_f32 v{r+i}, s33, v{r+i}")
                a(f"v_cvt_pk_bf16_f32 v{o}, v{r}, v{r+1}\nv_cvt_pk_bf16_f32 v{o+1}, v{r+2}, v{r+3}")
                a(f"buffer_store_dwordx2 {vr(o,2)}, v{EPI+4*c+g}, s[40:43], s34 offen offset:{2304*mt}")
    a("s_endpgm")
    a(f"{name}_cv:")
    a("s_sub_u32 s30, s21, 6\ns_mul_i32 s30, s30, 192\ns_mul_i32 s31, s25, 96\ns_add_u32 s30, s30, s31")
    a(f"s_mov_b32 s32, {VH_STRIDE}")
    for c in range(3):
        a(f"""v_add_u32 v28, s30, v2
        v_add_u32 v28, {32*c}, v28
        v_mul_u32_u24 v29, 3641, v28
        v_lshrrev_b32 v29, 16, v29
        v_mul_u32_u24 v30, 18, v29
        v_sub_u32 v30, v28, v30
        v_mul_lo_u32 v29, v29, s32
        v_lshl_add_u32 v29, v30, 4, v29
        v_mul_u32_u24 v30, 304, v3
        v_add_u32 v{EPI+c}, v29, v30""")
    a(f"s_mul_i32 s34, s27, 1216\ns_add_u32 s34, s34, {VF_OFF}")
    a(f"""s_mul_i32 s35, s30, 3641
    s_lshr_b32 s35, s35, 16
    v_lshrrev_b32 v28, 3, v1
    v_add_u32 v28, s35, v28
    v_mul_u32_u24 v29, 18, v28
    v_add_u32 v29, 17, v29
    v_subrev_u32 v29, s30, v29
    v_mul_lo_u32 v28, v28, s32
    v_and_b32 v30, 7, v1
    v_mul_u32_u24 v30, 304, v30
    v_add_u32 v28, v28, v30
    v_add_u32 v28, 288, v28
    v_mov_b32 v30, {OOB}
    v_cmp_gt_u32 vcc, 96, v29
    s_nop 1
    v_cndmask_b32 v28, v30, v28, vcc
    v_mov_b32 v16, 0x3f803f80
    v_mov_b32 v17, 0x3f803f80
    v_mov_b32 v18, 0x3f803f80
    v_mov_b32 v19, 0x3f803f80
    buffer_store_dwordx4 v[16:19], v28, s[40:43], s34 offen""")
    compute_loop(a, 7, reads_xw, lambda buf: [mf(acc(mt, c), frag(buf, mt), frag(buf, 2 + c)) for c in range(3) for mt in range(2)])
    t = 0
    for mt in range(2):
        for c in range(3):
            for m in range(2):
                r = acc(mt, c) + 8 * m
                o = FR0 + 4 * (t % 8); t += 1
                for i in range(4): a(f"v_cvt_pk_bf16_f32 v{o+i}, v{r+2*i}, v{r+2*i+1}")
                a(f"buffer_store_dwordx4 {vr(o,4)}, v{EPI+c}, s[40:43], s34 offen offset:{1216*mt+608*m}")
    a("s_endpgm")
    a(f"{name}_cu:")
    a("s_mul_i32 s29, s25, 12288\ns_add_u32 s29, s29, 16384")
    adr_kc(a, ADR + 4, "s29")
    a(f"v_mul_u32_u24 v{EPI}, 18432, v3\nv_lshl_add_u32 v{EPI}, v2, 4, v{EPI}")
    def reads_u(s, buf):
        return [rd128(frag(buf, 0), ADR + s, 0), rd128(frag(buf, 2), ADR + 4 + s, 0), rd128(frag(buf, 1), ADR + s, 4096),
                rd128(frag(buf, 3), ADR + 4 + s, 4096), rd128(frag(buf, 4), ADR + 4 + s, 8192)]
    compute_loop(a, 8, reads_u, lambda buf: [mf(acc(mt, c), frag(buf, mt), frag(buf, 2 + c)) for c in range(3) for mt in range(2)])
    a(f"""s_mul_i32 s34, s27, 73728
    s_mul_i32 s35, s25, 36864
    s_add_u32 s34, s34, s35
    s_sub_u32 s35, s21, 9
    s_mul_i32 s35, s35, 1536
    s_add_u32 s34, s34, s35
    s_add_u32 s34, s34, {UF_OFF}""")
    t = 0
    for mt in range(2):
        for jj in range(2):
            a(f"s_add_u32 s35, s34, {73728*mt + 9216*jj}")
            for c in range(3):
                r = acc(mt, c) + 8 * jj
                o = FR0 + 4 * (t % 8); t += 1
                for i in range(4): a(f"v_cvt_pk_bf16_f32 v{o+i}, v{r+2*i}, v{r+2*i+1}")
                a(f"buffer_store_dwordx4 {vr(o,4)}, v{EPI}, s[40:43], s35 offen offset:{512*c}")
    a(f"{name}_exit:\ns_endpgm")

def gen_k3(a, name):
    khead(a, name)
    a("""s_load_dwordx4 s[4:7], s[0:1], 16
    s_load_dwordx4 s[12:15], s[0:1], 64
    s_load_dwordx4 s[8:11], s[0:1], 88
    s_load_dwordx2 s[16:17], s[0:1], 112""")
    wave_id(a)
    a(f"""s_cmp_ge_u32 s2, 240
    s_cbranch_scc1 {name}_exit
    s_and_b32 s18, s2, 7
    s_lshr_b32 s19, s2, 3""")
    lane_common(a)
    a(f"""s_waitcnt lgkmcnt(0)
    s_cmp_ge_u32 s19, 6
    s_cbranch_scc1 {name}_c""")
    a("s_lshl_b32 s20, s18, 1\ns_and_b32 s21, s19, 1\ns_add_u32 s20, s20, s21\ns_lshr_b32 s21, s19, 1")
    a(f"s_cmp_ge_u32 s3, 4\ns_cbranch_scc0 {name}_ocomp")
    a("s_sub_u32 s23, s3, 4")
    srd(a, 40, 16, WS_USED)
    srd(a, 44, 4, 576*1152)
    a(f"s_lshl_b32 s24, s23, 16\ns_lshl_b32 s25, s20, 11\ns_add_u32 s24, s24, s25\ns_add_u32 s24, s24, {OF_OFF}")
    for n in range(4):
        a(f"v_lshlrev_b32 v{10+n}, 4, v1\nv_add_u32 v{10+n}, s24, v{10+n}\nv_add_u32 v{10+n}, {(n>>1)*32768 + (n&1)*1024}, v{10+n}")
    def rowmain():
        a("""v_lshrrev_b32 v28, 4, v30
        v_mul_u32_u24 v28, 18, v28
        v_bfe_u32 v31, v30, 3, 1
        v_lshl_add_u32 v28, v31, 2, v28
        v_bfe_u32 v31, v30, 2, 1
        v_lshl_add_u32 v28, v31, 3, v28
        v_and_b32 v31, 3, v30
        v_add_u32 v30, v28, v31""")
    def rowleft():
        a("""v_lshrrev_b32 v28, 1, v30
        v_mul_u32_u24 v28, 18, v28
        v_and_b32 v31, 1, v30
        v_add_u32 v30, v28, v31
        v_add_u32 v30, 16, v30""")
    loader_voff_w(a, 14, "s23", 1152, rowmain)
    loader_voff_w(a, 20, "s23", 1152, rowleft)
    a("s_mul_i32 s25, s21, 384")
    for n in range(12): a(f"v_add_u32 v{14+n}, s25, v{14+n}")
    a(f"s_mov_b32 s50, {8*32768}\ns_mov_b32 s51, {72*1152}\ns_branch {name}_ldgo")
    a(f"{name}_c:")
    a("""s_sub_u32 s19, s19, 6
    s_and_b32 s20, s18, 3
    s_lshl_b32 s20, s20, 3
    s_and_b32 s21, s19, 7
    s_add_u32 s20, s20, s21
    s_lshr_b32 s21, s18, 2
    s_mul_i32 s21, s21, 3
    s_lshr_b32 s22, s19, 3
    s_add_u32 s21, s21, s22""")
    a(f"s_cmp_ge_u32 s3, 4\ns_cbranch_scc0 {name}_ccomp")
    a("s_sub_u32 s23, s3, 4")
    srd(a, 40, 16, WS_USED)
    a("""s_cmp_ge_u32 s23, 2
    s_cselect_b32 s44, s14, s12
    s_cselect_b32 s45, s15, s13""")
    a(f"s_mov_b32 s46, {576*1152}\ns_mov_b32 s47, 0x00020000")
    a(f"""s_lshr_b32 s24, s23, 1
    s_mul_i32 s24, s24, {576*4096}
    s_and_b32 s25, s23, 1
    s_lshl_b32 s25, s25, 17
    s_add_u32 s24, s24, s25
    s_lshl_b32 s25, s20, 7
    s_add_u32 s24, s24, s25
    s_add_u32 s24, s24, {HT_OFF}
    v_lshrrev_b32 v30, 3, v1
    v_lshlrev_b32 v30, 12, v30
    v_bfe_u32 v31, v1, 4, 1
    v_lshlrev_b32 v31, 2, v31
    v_and_b32 v29, 7, v1
    v_xor_b32 v31, v31, v29
    v_lshl_add_u32 v30, v31, 4, v30
    v_add_u32 v30, s24, v30""")
    for n in range(4): a(f"v_add_u32 v{10+n}, {n*8*4096}, v30")
    a("s_mul_i32 s25, s21, 96\ns_and_b32 s26, s23, 1\ns_mul_i32 s26, s26, 48\ns_add_u32 s25, s25, s26")
    loader_voff_kc(a, 14, 6, lambda i: a(f"v_lshrrev_b32 v30, 3, v1\nv_add_u32 v30, s25, v30\nv_add_u32 v30, {8*i}, v30"))
    for n in range(6): a(f"v_add_u32 v{20+n}, 1024, v{14+n}")
    a(f"s_mov_b32 s50, {64*4096}\ns_mov_b32 s51, 128")
    a(f"{name}_ldgo:")
    a("s_lshl_b32 s52, s23, 12\ns_mul_i32 s53, s23, 6144\ns_add_u32 s53, s53, 16384\ns_mov_b32 s54, 0")
    loader(a, False, True)
    a(f"{name}_ocomp:")
    srd(a, 40, 10, 2048*4608)
    a("s_and_b32 s24, s3, 1\ns_lshr_b32 s25, s3, 1")
    a(f"s_lshl_b32 s26, s24, 10\nv_lshlrev_b32 v{ADR}, 11, v3\nv_lshl_add_u32 v{ADR}, v2, 4, v{ADR}\nv_add_u32 v{ADR}, s26, v{ADR}")
    a("s_mul_i32 s29, s25, 3")
    adr_w(a, ADR + 1, "s29")
    zero_acc(a, 96)
    def reads_o(s, buf):
        return [rd128(frag(buf, 0), ADR, 4096*s)] + reads_w(s, buf, ADR + 1)[:2] + [rd128(frag(buf, 1), ADR, 4096*s + 512)] + reads_w(s, buf, ADR + 1)[2:]
    a(f"v_mul_u32_u24 v{EPI}, {4*4608}, v3\nv_lshl_add_u32 v{EPI}, v2, 2, v{EPI}")
    compute_loop(a, 4, reads_o, lambda buf: [mf(acc(mt, c), frag(buf, mt), frag(buf, 2 + c)) for c in range(3) for mt in range(2)])
    a(f"""s_lshl_b32 s34, s20, 7
    s_lshl_b32 s35, s24, 6
    s_add_u32 s34, s34, s35
    s_mul_i32 s34, s34, 4608
    s_mul_i32 s35, s21, 768
    s_add_u32 s34, s34, s35
    s_mul_i32 s35, s25, 384
    s_add_u32 s34, s34, s35""")
    for mt in range(2):
        for r in range(16):
            a(f"s_add_u32 s35, s34, {(32*mt + 8*(r>>2) + (r&3))*4608}")
            for c in range(3):
                a(f"buffer_store_dword v{acc(mt,c)+r}, v{EPI}, s[40:43], s35 offen offset:{128*c}")
    a("s_endpgm")
    a(f"{name}_ccomp:")
    srd(a, 40, 10, 2048*4608)
    srd(a, 44, 6, 2048*1152)
    srd(a, 48, 8, 1152)
    a("s_and_b32 s24, s3, 1\ns_lshr_b32 s25, s3, 1")
    a(f"""s_lshl_b32 s26, s25, 13
    v_lshl_add_u32 v30, v3, 3, v4
    v_lshlrev_b32 v30, 7, v30
    v_add_u32 v30, v30, v5
    v_xor_b32 v31, s24, v6
    v_lshl_add_u32 v30, v31, 6, v30
    v_add_u32 v{ADR+4}, s26, v30""")
    a("s_mul_i32 s29, s25, 12288\ns_add_u32 s29, s29, 16384")
    adr_kc(a, ADR, "s29")
    zero_acc(a, 48)
    a("""s_lshl_b32 s30, s20, 6
    s_lshl_b32 s31, s24, 5
    s_add_u32 s30, s30, s31
    s_lshl_b32 s31, s25, 3
    s_add_u32 s30, s30, s31""")
    XD = 96
    a(f"""v_mul_u32_u24 v28, {2*1152}, v3
    v_lshl_add_u32 v28, v2, 1, v28
    s_mul_i32 s31, s30, 1152
    s_mul_i32 s32, s21, 192
    s_add_u32 s31, s31, s32
    v_lshlrev_b32 v29, 1, v2""")
    for c in range(3):
        a(f"buffer_load_ushort v{XD+24+c}, v29, s[48:51], s32 offen offset:{64*c}")
    for r in range(8):
        a(f"s_add_u32 s33, s31, {(4*(r>>2) + ((r&3)>>1) + 16*(r&1))*1152}")
        for c in range(3):
            a(f"buffer_load_ushort v{XD+8*c+r}, v28, s[44:47], s33 offen offset:{64*c}")
    def reads_c(s, buf):
        return [rdtr(frag(buf, 0), ADR + 4, (16*s)*128), rdtr(frag(buf, 0) + 2, ADR + 4, (16*s+4)*128)] + \
               [rd128(frag(buf, 2 + c), ADR + s, 4096*c) for c in range(3)]
    compute_loop(a, 5, reads_c, lambda buf: [mf(acc(0, c), frag(buf, 0), frag(buf, 2 + c)) for c in range(3)])
    a(f"""s_mul_i32 s33, s3, 6144
    s_add_u32 s33, s33, {2*SLOT}
    v_lshlrev_b32 v28, 4, v1
    v_add_u32 v29, s33, v28
    s_xor_b32 s33, s3, 2
    s_mul_i32 s33, s33, 6144
    s_add_u32 s33, s33, {2*SLOT}
    v_add_u32 v28, s33, v28
    v_mul_u32_u24 v{EPI}, {2*4608}, v3
    v_lshl_add_u32 v{EPI}, v2, 2, v{EPI}
    s_mul_i32 s34, s30, 4608
    s_mul_i32 s35, s21, 384
    s_add_u32 s34, s34, s35
    s_add_u32 s34, s34, 2304
    s_waitcnt vmcnt(0)""")
    for c in range(3):
        a(f"v_lshlrev_b32 v{XD+24+c}, 16, v{XD+24+c}")
    for c in range(3):
        for r in range(8):
            a(f"v_lshlrev_b32 v{XD+8*c+r}, 16, v{XD+8*c+r}")
    a(f"s_cmp_eq_u32 s25, 0\ns_cbranch_scc0 {name}_c1")
    for ri in range(2):
        if ri == 1: a(f"{name}_c1:")
        keep = 8 * ri; give = 8 * (1 - ri)
        for c in range(3):
            for q in range(2):
                a(f"ds_write_b128 v29, {vr(acc(0,c)+give+4*q,4)} offset:{(2*c+q)*1024}")
        for c in range(3):
            for r in range(8):
                a(f"v_fma_f32 v{acc(0,c)+keep+r}, v{XD+8*c+r}, v{XD+24+c}, v{acc(0,c)+keep+r}")
        a("s_waitcnt lgkmcnt(0)\ns_barrier")
        for c in range(3):
            for q in range(2):
                a(f"ds_read_b128 {vr(FR0+8*c+4*q,4)}, v28 offset:{(2*c+q)*1024}")
        a("s_waitcnt lgkmcnt(0)")
        for r in range(8):
            a(f"s_add_u32 s35, s34, {(4*(r>>2) + ((r&3)>>1) + 16*(r&1))*4608}")
            for c in range(3):
                a(f"v_add_f32 v{acc(0,c)+keep+r}, v{acc(0,c)+keep+r}, v{FR0+8*c+r}")
                a(f"buffer_store_dword v{acc(0,c)+keep+r}, v{EPI}, s[40:43], s35 offen offset:{128*c}")
        a("s_endpgm")
    a(f"{name}_exit:\ns_endpgm")
```

```python
import sys
from asm import *
import gemm, attn
NAME = "concat_heads__softmax_full_mha__ssm_conv_s5__prompt"
def build():
    ref = open(f"cdna_kernels/{NAME}.s.ref").read().split("\n")
    head = [l for l in ref if l.startswith(";") and "@launch" not in l and "Override launch" not in l and "grid=ceil" not in l]
    head += ["; @launch kernel=k1_kernel grid=(256,1,1) block=(512,1,1) lds=163840",
             "; @launch kernel=k2_kernel grid=(256,1,1) block=(512,1,1) lds=163840",
             "; @launch kernel=k3_kernel grid=(240,1,1) block=(512,1,1) lds=163840"]
    a = A()
    a('.amdgcn_target "amdgcn-amd-amdhsa--gfx950"\n.text')
    gemm.gen_k1(a, "k1_kernel")
    attn.gen_k2(a, "k2_kernel")
    gemm.gen_k3(a, "k3_kernel")
    s = "\n".join(head) + "\n" + a.text() + '.section .rodata,"a"\n' + kdesc("k1_kernel", 184) + kdesc("k2_kernel", 184) + kdesc("k3_kernel", 184)
    return s
if __name__ == "__main__":
    import asm
    if "--stamp" in sys.argv: asm.STAMP = True
    out = sys.argv[1] if len(sys.argv) > 1 else f"cdna_kernels/{NAME}.s"
    open(out, "w").write(build())
    print("wrote", out)
```

```python
class A:
    def __init__(self):
        self.l = []
        self.uid = 0
    def __call__(self, s):
        for x in s.strip("\n").split("\n"):
            x = x.strip()
            if not x: continue
            if x.endswith(":") or x.startswith("."):
                self.l.append(x)
            else:
                self.l.append("    " + x)
    def lab(self, p="L"):
        self.uid += 1
        return f"{p}_{self.uid}"
    def text(self):
        return "\n".join(self.l) + "\n"

def vr(a, n):
    return f"v[{a}:{a+n-1}]" if n > 1 else f"v{a}"
def sr(a, n):
    return f"s[{a}:{a+n-1}]" if n > 1 else f"s{a}"
def srd(a, d, base, nbytes):
    a(f"""s_mov_b32 s{d}, s{base}
    s_mov_b32 s{d+1}, s{base+1}
    s_mov_b32 s{d+2}, {nbytes}
    s_mov_b32 s{d+3}, 0x00020000""")
def kdesc(name, vgpr, sgpr=96):
    acc = (vgpr + 3) // 4 * 4
    return f""".p2align 6
.amdhsa_kernel {name}
  .amdhsa_next_free_vgpr {vgpr}
  .amdhsa_next_free_sgpr {sgpr}
  .amdhsa_accum_offset {acc}
  .amdhsa_group_segment_fixed_size 0
  .amdhsa_kernarg_size 120
  .amdhsa_user_sgpr_count 2
  .amdhsa_user_sgpr_kernarg_segment_ptr 1
  .amdhsa_system_sgpr_workgroup_id_x 1
.end_amdhsa_kernel
"""
def khead(a, name):
    a(f""".globl {name}
.p2align 8
.type {name},@function
{name}:""")

STAMP = False
STAMP_OFF = 32 << 20
def stamp(a, idx):
    if not STAMP: return
    a(f"""s_memrealtime s[66:67]
    s_memtime s[68:69]
    s_waitcnt lgkmcnt(0)
    s_mov_b32 s{70+2*idx}, s66
    s_mov_b32 s{71+2*idx}, s68""")
def stamp_flush(a, kidx, n, wsreg=16):
    if not STAMP: return
    a(f"""s_mov_b32 s88, s{wsreg}
    s_mov_b32 s89, s{wsreg+1}
    s_mov_b32 s90, 0x4000000
    s_mov_b32 s91, 0x00020000
    s_lshl_b32 s66, s2, 3
    s_add_u32 s66, s66, s3
    s_lshl_b32 s66, s66, 6
    s_add_u32 s66, s66, {STAMP_OFF + kidx*262144}
    v_mov_b32 v0, 0
    s_mov_b64 exec, 1""")
    for i in range(2*n):
        a(f"v_mov_b32 v1, s{70+i}\nbuffer_store_dword v1, v0, s[88:91], s66 offen offset:{4*i}")
```

```python
from asm import *
from gemm import *
import asm, gemm

LDS_KM = 65536
LDS_V = 81920
LDS_K2 = 163840
S0 = 32; OA = 96; P0 = 128; QM = 144; QL = 152; KM = 156; KL = 164; VB = 168
VAK = 10; VAL = 11; VAV = 12
GROUPS = [8, 16, 40]

def mf16(d, x, y, c): return f"v_mfma_f32_32x32x16_bf16 {vr(d,16)}, {vr(x,4)}, {vr(y,4)}, {c}"

def gen_k2(a, name):
    khead(a, name)
    gemm.KIDX[0] = 1
    asm.stamp(a, 0)
    a("""s_load_dwordx4 s[4:7], s[0:1], 32
    s_load_dwordx2 s[8:9], s[0:1], 80
    s_load_dwordx2 s[16:17], s[0:1], 112""")
    wave_id(a)
    a(f"""s_cmp_ge_u32 s2, 256
    s_cbranch_scc1 {name}_exit
    s_and_b32 s18, s2, 7
    s_lshr_b32 s19, s2, 3
    s_lshl_b32 s20, s18, 2
    s_lshr_b32 s21, s19, 3
    s_add_u32 s20, s20, s21
    s_and_b32 s21, s19, 7
    v_and_b32 v1, 63, v0
    v_and_b32 v2, 31, v0
    v_bfe_u32 v3, v0, 5, 1
    s_lshr_b32 s22, s20, 1
    s_mul_i32 s22, s22, {PAIR_STRIDE}
    s_and_b32 s23, s20, 1
    s_waitcnt lgkmcnt(0)""")
    srd(a, 40, 16, WS_USED)
    a(f"s_cmp_ge_u32 s3, 4\ns_cbranch_scc1 {name}_help")
    a("s_setprio 2")
    a(f"""s_lshl_b32 s24, s21, 3
    s_lshl_b32 s25, s3, 1
    s_add_u32 s24, s24, s25
    s_mul_i32 s25, s24, 2304
    s_add_u32 s25, s25, s22
    s_lshl_b32 s26, s23, 10
    s_add_u32 s26, s26, s25
    v_lshlrev_b32 v{VAK}, 4, v1
    v_mul_u32_u24 v4, 2304, v3
    v_lshl_add_u32 v4, v2, 3, v4
    buffer_load_dwordx4 {vr(QM,4)}, v{VAK}, s[40:43], s26 offen
    buffer_load_dwordx4 {vr(QM+4,4)}, v{VAK}, s[40:43], s26 offen offset:2304
    buffer_load_dwordx2 {vr(QL,2)}, v4, s[40:43], s25 offen offset:2048
    v_lshlrev_b32 v{VAL}, 3, v2
    v_add_u32 v{VAL}, {LDS_KM}, v{VAL}""")
    a(f"""v_min_u32 v4, 18, v2
    v_add_u32 v5, -20, v2
    v_cmp_gt_u32 vcc, 8, v5
    s_nop 1
    v_cndmask_b32 v4, v4, 0, vcc
    v_mul_u32_u24 v5, 304, v3
    v_lshl_add_u32 v{VAV}, v4, 4, v5
    v_add_u32 v{VAV}, {LDS_V}, v{VAV}""")
    for i in range(32): a(f"v_mov_b32 v{OA+i}, 0")
    for i in range(4): a(f"v_mov_b32 v{P0+12+i}, 0")
    for i in range(4): a(f"v_mov_b32 v{VB+8+4+i}, 0")
    a(f"""s_lshl_b32 s27, s20, 16
    s_lshl_b32 s28, s24, 9
    s_add_u32 s27, s27, s28
    s_add_u32 s27, s27, {OF_OFF}
    s_lshr_b32 s29, s20, 2
    s_lshl_b32 s29, s29, 15
    s_add_u32 s28, s28, s29
    s_and_b32 s29, s20, 3
    s_lshl_b32 s29, s29, 2
    s_add_u32 s28, s28, s29
    s_add_u32 s28, s28, {OF_OFF + 64*32768}
    v_lshlrev_b32 v13, 15, v3
    v_lshl_add_u32 v13, v2, 4, v13
    v_lshlrev_b32 v14, 30, v3
    v_lshl_add_u32 v14, v2, 4, v14
    s_waitcnt vmcnt(0)
    s_cmp_eq_u32 s23, 0
    s_cselect_b32 s30, -1, 0
    s_cselect_b32 s31, 0, -1
    v_and_b32 v{QL}, s30, v{QL}
    v_and_b32 v{QL+1}, s31, v{QL+1}
    s_mov_b32 s32, 0""")
    asm.stamp(a, 1)
    a("s_barrier")
    asm.stamp(a, 2)
    def rdK(t, buf): return f"ds_read_b128 {vr(KM+4*buf,4)}, v{VAK} offset:{1024*t}"
    def rdL(t, buf): return f"ds_read_b64 {vr(KL+2*buf,2)}, v{VAL} offset:{256*t}"
    def rdV(t, m, buf): return f"ds_read_b128 {vr(VB+8*buf+4*m,4)}, v{VAV} offset:{1216*t+608*m}"
    def qk_a(buf): return mf16(S0+32*buf, KM+4*buf, QM, "0")
    def qk_b(buf): return mf16(S0+32*buf+16, KM+4*buf, QM+4, "0")
    def qk_l(buf): return f"v_mfma_f32_32x32x4_2b_bf16 {vr(S0+32*buf,32)}, {vr(KL+2*buf,2)}, {vr(QL,2)}, {vr(S0+32*buf,32)}"
    def pv(q, m, buf): return mf16(OA+16*q, VB+8*buf+4*m, P0+8*q+4*m, vr(OA+16*q,16))
    def H(k, buf):
        b = S0 + 32*buf + 4*k
        for i in range(4): a(f"v_exp_f32 v{b+i}, v{b+i}")
        a(f"v_cvt_pk_bf16_f32 v{P0+2*k}, v{b}, v{b+1}\nv_cvt_pk_bf16_f32 v{P0+2*k+1}, v{b+2}, v{b+3}")
    a(rdK(0, 0)); a(rdL(0, 0)); a(rdK(1, 1)); a(rdL(1, 1)); a(rdV(0, 0, 0)); a(rdV(0, 1, 0))
    a("s_waitcnt lgkmcnt(4)")
    a(qk_a(0)); a(qk_b(0)); a("s_nop 9"); a(qk_l(0)); a("s_nop 15\ns_nop 3")
    loop = f"{name}_loop"
    a(f".p2align 6\n{loop}:")
    barmask = 0; t0 = 0
    for g in GROUPS[:-1]:
        t0 += g; barmask |= 1 << (t0 // 8 - 1)
    for j in range(8):
        b = j & 1; nb = b ^ 1
        H(0, b); a(pv(1, 1, nb)); a("s_waitcnt lgkmcnt(0)")
        H(1, b); a(qk_a(nb)); a(rdV(j+1, 0, nb))
        H(2, b); a(qk_b(nb)); a(rdV(j+1, 1, nb))
        H(3, b); a(pv(0, 0, b)); a(rdK(j+2, b))
        H(4, b); a(qk_l(nb))
        H(5, b)
        H(6, b); a(pv(0, 1, b)); a(rdL(j+2, b))
        H(7, b); a(pv(1, 0, b))
        if j == 4:
            a(f"s_bitcmp1_b32 {barmask}, s32")
        if j == 5:
            a(f"s_cbranch_scc0 {name}_nobar\ns_barrier\n{name}_nobar:")
        if j == 6:
            a("s_add_u32 s32, s32, 1")
        if j == 7:
            a("s_cmp_lt_u32 s32, 8")
            a(f"v_add_u32 v{VAK}, 8192, v{VAK}\nv_add_u32 v{VAL}, 2048, v{VAL}\nv_add_u32 v{VAV}, {8*1216}, v{VAV}")
            a(f"s_cbranch_scc1 {loop}")
    a(pv(1, 1, 1))
    a("s_mov_b32 s33, 0")
    asm.stamp(a, 3)
    a(f"{name}_fin:")
    a("s_nop 15\ns_nop 3\nv_cmp_eq_u32 vcc, 0, v3\ns_nop 1")
    for q in range(2):
        a(f"v_cndmask_b32 v{4+q}, v{OA+16*q+12}, v{OA+16*q+10}, vcc")
    a(f"s_cmp_lg_u32 s33, 0\ns_cbranch_scc1 {name}_store")
    a(f"v_min_f32 v6, v4, v5\nv_max_f32 v7, v4, v5")
    for q in range(2):
        o = OA + 16*q
        for i in range(0, 10, 2):
            a(f"v_max3_f32 v7, abs(v{o+i}), abs(v{o+i+1}), v7")
    a(f"""v_add_f32 v8, v4, v5
    v_cmp_le_f32 vcc, {hex(f2u(2.0**-60))}, v6
    s_mov_b64 s[34:35], vcc
    v_cmp_ge_f32 vcc, {hex(f2u(2.0**60))}, v8
    s_and_b64 s[34:35], s[34:35], vcc
    v_cmp_ge_f32 vcc, {hex(f2u(2.0**120))}, v7
    s_and_b64 s[34:35], s[34:35], vcc""")
    for q in range(2):
        o = OA + 16*q
        for i in range(0, 10, 2):
            a(f"v_cmp_o_f32 vcc, v{o+i}, v{o+i+1}\ns_and_b64 s[34:35], s[34:35], vcc")
    a(f"s_cmp_eq_u64 s[34:35], exec\ns_cbranch_scc0 {name}_slow")
    a(f"{name}_store:")
    for q in range(2):
        o = OA + 16*q
        a(f"v_rcp_f32 v{4+q}, v{4+q}\ns_nop 0")
        for i in range(10): a(f"v_mul_f32 v{o+i}, v{o+i}, v{4+q}")
        for i in range(5): a(f"v_cvt_pk_bf16_f32 v{P0+8*q+i}, v{o+2*i}, v{o+2*i+1}")
        a(f"buffer_store_dwordx4 {vr(P0+8*q,4)}, v13, s[40:43], s27 offen offset:{512*q}")
        a(f"buffer_store_dword v{P0+8*q+4}, v14, s[40:43], s28 offen offset:{512*q}")
    endk(a)
    a(f"{name}_slow:")
    def reset():
        a(f"v_subrev_u32 v{VAK}, 65536, v{VAK}\nv_subrev_u32 v{VAL}, 16384, v{VAL}\ns_mov_b32 s32, 0")
    def qk_plain():
        a(rdK(0, 0)); a(rdL(0, 0)); a("s_waitcnt lgkmcnt(0)")
        a(qk_a(0)); a(qk_b(0)); a("s_nop 9"); a(qk_l(0)); a("s_nop 15\ns_nop 3")
    reset()
    a("v_mov_b32 v6, 0xff800000\nv_mov_b32 v7, 0xff800000")
    a(f"{name}_slowa:")
    qk_plain()
    for q in range(2):
        for i in range(0, 16, 2):
            a(f"v_max3_f32 v{6+q}, v{S0+16*q+i}, v{S0+16*q+i+1}, v{6+q}")
    a(f"""v_add_u32 v{VAK}, 1024, v{VAK}
    v_add_u32 v{VAL}, 256, v{VAL}
    s_add_u32 s32, s32, 1
    s_cmp_lt_u32 s32, 64
    s_cbranch_scc1 {name}_slowa
    v_xor_b32 v8, 32, v1
    v_lshlrev_b32 v8, 2, v8
    ds_bpermute_b32 v4, v8, v6
    ds_bpermute_b32 v5, v8, v7
    s_waitcnt lgkmcnt(0)
    v_max_f32 v6, v6, v4
    v_max_f32 v7, v7, v5""")
    reset()
    a(f"v_subrev_u32 v{VAV}, {64*1216}, v{VAV}")
    for i in range(32): a(f"v_mov_b32 v{OA+i}, 0")
    a(f"{name}_slowb:")
    a(rdV(0, 0, 0)); a(rdV(0, 1, 0))
    qk_plain()
    for q in range(2):
        for i in range(16): a(f"v_sub_f32 v{S0+16*q+i}, v{S0+16*q+i}, v{6+q}")
    for k in range(8): H(k, 0)
    a("s_nop 1")
    for q in range(2):
        for m in range(2): a(pv(q, m, 0))
    a(f"""v_add_u32 v{VAK}, 1024, v{VAK}
    v_add_u32 v{VAL}, 256, v{VAL}
    v_add_u32 v{VAV}, 1216, v{VAV}
    s_nop 7
    s_add_u32 s32, s32, 1
    s_cmp_lt_u32 s32, 64
    s_cbranch_scc1 {name}_slowb
    s_mov_b32 s33, 1
    s_branch {name}_fin""")
    a(f"{name}_help:")
    a("s_sub_u32 s24, s3, 4")
    a(f"""v_lshlrev_b32 v10, 4, v1
    v_lshrrev_b32 v11, 4, v1
    v_mul_u32_u24 v11, 2304, v11
    v_and_b32 v12, 15, v1
    v_lshl_add_u32 v11, v12, 4, v11
    s_add_u32 s25, s22, {KP_OFF}
    s_lshl_b32 s26, s23, 10
    s_add_u32 s26, s26, s25
    s_mul_i32 s27, s24, 2304
    s_add_u32 s26, s26, s27
    s_add_u32 s25, s25, 2048
    s_mul_i32 s27, s24, {4*2304}
    s_add_u32 s25, s25, s27
    s_mul_i32 s27, s20, {VH_STRIDE}
    s_add_u32 s27, s27, {VF_OFF}
    s_lshl_b32 s28, s24, 10
    s_add_u32 s27, s27, s28""")
    def dma(vo, sbase, soff, lds):
        a(f"s_add_u32 s29, {sbase}, {soff}\ns_add_u32 m0, s28, {lds}\ns_nop 0\nbuffer_load_dwordx4 v{vo}, s[40:43], s29 offen lds")
    cnt = []
    kdone = 0; mdone = 0; vdone = 0; tend = 0
    groups = []
    for g in GROUPS:
        tend += g
        lst = []
        kn = tend // 4
        mn = -(-tend // 16)
        vn = -(-(tend * 1216) // 4096)
        for i in range(mdone, mn): lst.append((11, "s25", i*16*2304, LDS_KM + i*4096))
        ks = [(10, "s26", i*4*2304, i*4096) for i in range(kdone, kn)]
        vs = [(10, "s27", i*4096, LDS_V + i*4096) for i in range(vdone, vn)]
        while ks or vs:
            if ks: lst.append(ks.pop(0))
            if vs: lst.append(vs.pop(0))
        kdone, mdone, vdone = kn, mn, vn
        groups.append(lst)
    assert vdone == 19 and kdone == 16 and mdone == 4
    for x in groups[0]: dma(*x)
    for x in groups[1]: dma(*x)
    a(f"s_waitcnt vmcnt({len(groups[1])})")
    asm.stamp(a, 1)
    a("s_barrier")
    for x in groups[2]: dma(*x)
    a(f"s_waitcnt vmcnt({len(groups[2])})\ns_barrier")
    a(f"s_waitcnt vmcnt(0)")
    asm.stamp(a, 2)
    a("s_barrier")
    asm.stamp(a, 3)
    gen_prefetch(a, name)
    a("s_setprio 3")
    gen_scan(a, name)
    endk(a)
    a(f"{name}_exit:\ns_endpgm")

def gen_prefetch(a, name):
    a("""s_load_dwordx4 s[56:59], s[0:1], 16
    s_load_dwordx4 s[60:63], s[0:1], 64
    s_lshl_b32 s25, s19, 2
    s_add_u32 s25, s25, s24
    s_lshl_b32 s25, s25, 13
    v_lshlrev_b32 v4, 7, v1
    s_waitcnt lgkmcnt(0)""")
    srd(a, 44, 56, 576*1152)
    a("buffer_load_dword v5, v4, s[44:47], s25 offen")
    a(f"s_lshr_b32 s26, s18, 2\ns_mul_i32 s26, s26, {288*1152}\ns_add_u32 s27, s26, {288*1152}\ns_add_u32 s26, s26, s25")
    a("s_mov_b32 s48, s60\ns_mov_b32 s49, s61\ns_mov_b32 s50, s27\ns_mov_b32 s51, 0x00020000")
    a("s_mov_b32 s52, s62\ns_mov_b32 s53, s63\ns_mov_b32 s54, s27\ns_mov_b32 s55, 0x00020000")
    a("buffer_load_dword v6, v4, s[48:51], s26 offen\nbuffer_load_dword v7, v4, s[52:55], s26 offen")
    a(f"s_and_b32 s26, s18, 3\ns_mul_i32 s26, s26, {512*1152}\ns_add_u32 s27, s26, {512*1152}\ns_add_u32 s26, s26, s25")
    a("s_mov_b32 s44, s58\ns_mov_b32 s45, s59\ns_mov_b32 s46, s27\ns_mov_b32 s47, 0x00020000")
    a("buffer_load_dword v8, v4, s[44:47], s26 offen")
    a("s_waitcnt vmcnt(0)")

def gen_scan(a, name):
    a(f"""s_lshl_b32 s25, s24, 5
    s_add_u32 s25, s25, s19
    s_cmp_ge_u32 s25, 72
    s_cbranch_scc1 {name}_exit
    s_mul_i32 s26, s18, 72
    s_add_u32 s25, s25, s26""")
    srd(a, 44, 4, 1152); srd(a, 48, 6, 1152); srd(a, 52, 8, 1152)
    UR = 32
    XR = 64
    XI = 96
    a(f"""s_lshl_b32 s26, s25, 1
    v_mov_b32 v4, s26
    buffer_load_ushort v5, v4, s[44:47], 0 offen
    buffer_load_ushort v6, v4, s[48:51], 0 offen
    buffer_load_ushort v7, v4, s[52:55], 0 offen
    s_mov_b32 s27, 73728
    v_mul_lo_u32 v8, v1, s27
    s_lshl_b32 s27, s25, 4
    s_add_u32 s27, s27, {UF_OFF}""")
    for q in range(8):
        a(f"s_add_u32 s28, s27, {9216*q}\nbuffer_load_dwordx4 {vr(UR+4*q,4)}, v8, s[40:43], s28 offen")
    LOG2E = 1.4426950408889634
    a(f"""s_waitcnt vmcnt(8)
    v_lshlrev_b32 v5, 16, v5
    v_lshlrev_b32 v6, 16, v6
    v_lshlrev_b32 v7, 16, v7
    v_mul_f32 v7, {hex(f2u(LOG2E))}, v7
    v_exp_f32 v7, v7
    s_nop 0
    v_cvt_pk_bf16_f32 v7, v7, v7
    v_and_b32 v7, 0xffff0000, v7
    v_mul_f32 v9, v7, v5
    v_mul_f32 v10, v7, v6
    v_mul_f32 v9, {hex(f2u(LOG2E))}, v9
    v_exp_f32 v9, v9
    v_mul_f32 v10, 0.15915494309189535, v10
    v_fract_f32 v10, v10
    v_cos_f32 v11, v10
    v_sin_f32 v12, v10
    s_nop 0
    v_mul_f32 v14, v9, v11
    v_mul_f32 v16, v9, v12
    v_add_f32 v11, -1.0, v14
    v_mul_f32 v9, v5, v5
    v_fma_f32 v9, v6, v6, v9
    v_rcp_f32 v9, v9
    v_mul_f32 v18, v11, v5
    v_fma_f32 v18, v16, v6, v18
    v_mul_f32 v20, v16, v5
    v_fma_f32 v20, -v11, v6, v20
    v_add_f32 v9, v9, v9
    v_mul_f32 v18, v18, v9
    v_mul_f32 v20, v20, v9
    v_sub_f32 v16, 0, v16
    v_mov_b32 v15, v14
    v_mov_b32 v17, v16
    v_mov_b32 v19, v18
    v_mov_b32 v21, v20""")
    def csq(dr, di, sr_, si):
        a(f"""v_mul_f32 v9, v{si}, v{si}
        v_mul_f32 v{di}, v{sr_}, v{si}
        v_fma_f32 v{dr}, v{sr_}, v{sr_}, -v9
        v_add_f32 v{di}, v{di}, v{di}""")
    csq(22, 23, 14, 16)
    for _ in range(3): csq(22, 23, 22, 23)
    a("s_waitcnt vmcnt(0)")
    def pk(op, d, x, y, z=None, neg=""):
        if z is None: a(f"v_pk_mul_f32 {vr(d,2)}, {vr(x,2)}, {vr(y,2)} {neg}")
        else: a(f"v_pk_fma_f32 {vr(d,2)}, {vr(x,2)}, {vr(y,2)}, {vr(z,2)} {neg}")
    NEG0 = "neg_lo:[1,0,0] neg_hi:[1,0,0]"
    for D in range(16):
        a(f"""v_lshlrev_b32 v24, 16, v{UR+D}
        v_and_b32 v25, 0xffff0000, v{UR+D}
        v_lshlrev_b32 v26, 16, v{UR+16+D}
        v_and_b32 v27, 0xffff0000, v{UR+16+D}""")
        pk("m", XR+2*D, 18, 24)
        pk("m", XI+2*D, 18, 26, None, "neg_lo:[1,0] neg_hi:[1,0]")
        pk("f", XR+2*D, 20, 26, XR+2*D, NEG0)
        pk("f", XI+2*D, 20, 24, XI+2*D, NEG0)
    def step(er, ei, nr, ni, D):
        pk("f", nr, 14, er, XR+2*D)
        pk("f", ni, 14, ei, XI+2*D)
        pk("f", nr, 16, ei, nr, NEG0)
        pk("f", ni, 16, er, ni)
    cur = (XR, XI)
    for D in range(1, 16):
        nx = (24, 26) if D & 1 else (28, 30)
        step(cur[0], cur[1], nx[0], nx[1], D); cur = nx
    assert cur == (24, 26)
    def cmac(dr, di, pr, pi, xr, xi, ar, ai):
        a(f"""v_fma_f32 v{dr}, v{pr}, v{xr}, v{ar}
        v_fma_f32 v{di}, v{pr}, v{xi}, v{ai}
        v_fma_f32 v{dr}, -v{pi}, v{xi}, v{dr}
        v_fma_f32 v{di}, v{pi}, v{xr}, v{di}""")
    cmac(28, 29, 22, 23, 24, 26, 25, 27)
    csq(10, 11, 22, 23)
    for k in range(6):
        a(f"""v_subrev_u32 v12, {1<<k}, v1
        v_lshlrev_b32 v12, 2, v12
        v_cmp_le_u32 vcc, {1<<k}, v1
        ds_bpermute_b32 v30, v12, v28
        ds_bpermute_b32 v31, v12, v29
        s_waitcnt lgkmcnt(0)
        v_cndmask_b32 v30, 0, v30, vcc
        v_cndmask_b32 v31, 0, v31, vcc""")
        cmac(28, 29, 10, 11, 30, 31, 28, 29)
        if k < 5: csq(10, 11, 10, 11)
    a(f"""v_subrev_u32 v12, 1, v1
    v_lshlrev_b32 v12, 2, v12
    v_cmp_le_u32 vcc, 1, v1
    ds_bpermute_b32 v30, v12, v28
    ds_bpermute_b32 v31, v12, v29
    s_waitcnt lgkmcnt(0)
    v_cndmask_b32 v28, 0, v30, vcc
    v_cndmask_b32 v30, 0, v31, vcc""")
    cmac(29, 31, 22, 23, 28, 30, 24, 26)
    cur = (28, 30)
    for D in range(16):
        step(cur[0], cur[1], XR+2*D, XI+2*D, D); cur = (XR+2*D, XI+2*D)
        a(f"v_cvt_pk_bf16_f32 v{UR+D}, v{XR+2*D}, v{XR+2*D+1}\nv_cvt_pk_bf16_f32 v{UR+16+D}, v{XI+2*D}, v{XI+2*D+1}")
    a(f"""v_lshlrev_b32 v8, 6, v1
    s_lshl_b32 s27, s25, 12
    s_add_u32 s27, s27, {HT_OFF}
    s_add_u32 s28, s27, {576*4096}""")
    for q in range(4): a(f"buffer_store_dwordx4 {vr(UR+4*q,4)}, v8, s[40:43], s27 offen offset:{16*q}")
    for q in range(4): a(f"buffer_store_dwordx4 {vr(UR+16+4*q,4)}, v8, s[40:43], s28 offen offset:{16*q}")
```

```python
from asm import *
import asm
KIDX = [0]

QP_OFF = 0
PAIR_STRIDE = 64 * 2304
KP_OFF = 16 * PAIR_STRIDE
VF_OFF = 32 * PAIR_STRIDE
VH_STRIDE = 64 * 1216
OF_OFF = VF_OFF + 32 * VH_STRIDE
UF_OFF = OF_OFF + 72 * 2048 * 16
HT_OFF = UF_OFF + 64 * 73728
WS_USED = HT_OFF + 2 * 576 * 4096
OOB = 0x40000000
SLOT = 40960
QSCALE = (18 ** -0.5) * 1.4426950408889634

import struct
def f2u(x): return struct.unpack("<I", struct.pack("<f", x))[0]

ACC = 32
FR0 = 128
ADR = 8
EPI = 168

def loader(a, rotate, alt):
    def issue(i):
        slot = (i % 4) * SLOT
        a("s_mul_i32 s48, s54, s50\ns_mul_i32 s49, s54, s51")
        for n in range(4):
            a(f"s_add_u32 m0, s52, {slot + n*1024}\ns_nop 0\nbuffer_load_dwordx4 v{10+n}, s[40:43], s48 offen lds")
        for n in range(6):
            if alt and i == 8:
                a(f"s_add_u32 m0, s53, {slot + n*1024}\ns_nop 0\nbuffer_load_dwordx4 v{20+n}, s[44:47], 0 offen lds")
            else:
                a(f"s_add_u32 m0, s53, {slot + n*1024}\ns_nop 0\nbuffer_load_dwordx4 v{14+n}, s[44:47], s49 offen lds")
        a("s_add_u32 s54, s54, 1")
        if rotate:
            a("s_cmp_eq_u32 s54, 9\ns_cselect_b32 s54, 0, s54")
    issued = 0
    asm.stamp(a, 1)
    issue(0); issue(1); issued = 2
    for i in range(9):
        a(f"s_waitcnt vmcnt({10*(issued-1-i)})")
        if i in (0, 4, 8): asm.stamp(a, 2 + i // 4)
        a("s_barrier")
        tgt = min(9, i + 4)
        while issued < tgt:
            issue(issued); issued += 1
    asm.stamp(a, 5)
    asm.stamp_flush(a, KIDX[0], 6)
    a("s_endpgm")

def compute_loop(a, nadr, reads, mfmas):
    a(f"s_mov_b32 s60, 0\ns_mov_b32 s61, 0\ns_mov_b32 s64, {SLOT}\ns_mov_b32 s65, {(-3*SLOT) & 0xffffffff}")
    asm.stamp(a, 1)
    a("s_barrier")
    asm.stamp(a, 2)
    for r in reads(0, 0): a(r)
    loop = a.lab("L_gl"); last = a.lab("L_gl_last"); done = a.lab("L_gl_done")
    a(f"{loop}:")
    def interleave(ms, rs, pre=0):
        n = len(ms)
        per = -(-len(rs) // max(1, n - 2)) if n > 3 else -(-len(rs) // max(1, n - 1))
        k = 0
        for m in ms:
            a(m)
            for x in rs[k:k+per]: a(x)
            k += per
        for x in rs[k:]: a(x)
    for s in range(3):
        a("s_waitcnt lgkmcnt(0)")
        interleave(mfmas(s & 1), reads(s + 1, (s + 1) & 1))
    a("s_waitcnt lgkmcnt(0)")
    a(f"s_cmp_eq_u32 s60, 8\ns_cbranch_scc1 {last}")
    ms = mfmas(1)
    a(ms[0])
    a(f"""s_add_u32 s61, s61, 1
    s_cmp_eq_u32 s61, 4
    s_cselect_b32 s62, s65, s64
    s_cselect_b32 s61, 0, s61
    s_barrier""")
    for k in range(nadr): a(f"v_add_u32 v{ADR+k}, s62, v{ADR+k}")
    interleave(ms[1:], reads(0, 0))
    a(f"s_add_u32 s60, s60, 1\ns_branch {loop}")
    a(f"{last}:")
    for m in ms: a(m)
    a("s_nop 15\ns_nop 3")
    asm.stamp(a, 3)

def endk(a):
    asm.stamp(a, 4)
    if asm.STAMP: a("s_waitcnt vmcnt(0)")
    asm.stamp(a, 5)
    asm.stamp_flush(a, KIDX[0], 6)
    a("s_endpgm")

def frag(buf, k): return FR0 + 20 * buf + 4 * k
def mf(d, x, y): return f"v_mfma_f32_32x32x16_bf16 {vr(d,16)}, {vr(x,4)}, {vr(y,4)}, {vr(d,16)}"
def acc(mt, c): return ACC + 16 * (3 * mt + c)

def lane_common(a):
    a("""v_and_b32 v1, 63, v0
    v_and_b32 v2, 31, v0
    v_bfe_u32 v3, v0, 5, 1
    v_bfe_u32 v4, v0, 2, 2
    v_bfe_u32 v5, v0, 4, 1
    v_lshlrev_b32 v5, 5, v5
    v_and_b32 v6, 3, v0
    v_lshl_add_u32 v5, v6, 3, v5
    v_bfe_u32 v6, v0, 3, 1
    v_bfe_u32 v7, v0, 1, 3""")

def adr_kc(a, dst, sbase):
    a(f"v_lshlrev_b32 v30, 7, v2\nv_add_u32 v30, {sbase}, v30")
    for s in range(4):
        a(f"v_or_b32 v31, {2*s}, v3\nv_xor_b32 v31, v31, v7\nv_lshl_add_u32 v{dst+s}, v31, 4, v30")

def adr_w(a, dst, s_wn3):
    a("v_lshl_add_u32 v30, v3, 3, v4\nv_mul_u32_u24 v30, 384, v30\nv_add_u32 v30, v30, v5")
    for c in range(3):
        a(f"s_add_u32 s63, {s_wn3}, {c}\nv_xor_b32 v31, s63, v6\nv_lshl_add_u32 v{dst+c}, v31, 6, v30")

def zero_acc(a, n):
    for i in range(n): a(f"v_mov_b32 v{ACC+i}, 0")

def rd128(dst, adr, off): return f"ds_read_b128 {vr(dst,4)}, v{adr} offset:{off}"
def rdtr(dst, adr, off): return f"ds_read_b64_tr_b16 {vr(dst,2)}, v{adr} offset:{off}"

def reads_w(s, buf, adr0):
    out = []
    for c in range(3):
        for e in range(2):
            out.append(rdtr(frag(buf, 2 + c) + 2 * e, adr0 + c, 16384 + (16 * s + 4 * e) * 384))
    return out

def loader_voff_kc(a, dst, n, rowexpr, pitch=1152):
    for i in range(n):
        rowexpr(i)
        a(f"""v_mul_u32_u24 v30, {pitch}, v30
        v_lshrrev_b32 v31, 4, v1
        v_add_u32 v31, {4*(i&1)}, v31
        v_and_b32 v29, 7, v1
        v_xor_b32 v31, v31, v29
        v_lshl_add_u32 v{dst+i}, v31, 4, v30""")

def loader_voff_w(a, dst, s_lw, pitch, rowmap=None):
    a(f"s_mul_i32 s63, {s_lw}, 384")
    for n in range(6):
        a(f"""v_add_u32 v28, s63, v1
        v_add_u32 v28, {64*n}, v28
        v_mul_u32_u24 v30, 2731, v28
        v_lshrrev_b32 v30, 16, v30
        v_mul_u32_u24 v29, 24, v30
        v_sub_u32 v29, v28, v29
        v_bfe_u32 v31, v30, 1, 1
        v_lshlrev_b32 v31, 2, v31
        v_xor_b32 v29, v29, v31""")
        if rowmap: rowmap()
        a(f"v_mul_u32_u24 v30, {pitch}, v30\nv_lshl_add_u32 v{dst+n}, v29, 4, v30")

def wave_id(a):
    a("""v_lshrrev_b32 v1, 6, v0
    s_nop 0
    v_readfirstlane_b32 s3, v1""")

def gen_k1(a, name, rotate=True):
    khead(a, name)
    KIDX[0] = 0 if 'k1' in name else 2
    asm.stamp(a, 0)
    a("""s_load_dwordx4 s[4:7], s[0:1], 0
    s_load_dwordx2 s[8:9], s[0:1], 24
    s_load_dwordx4 s[12:15], s[0:1], 48
    s_load_dwordx2 s[16:17], s[0:1], 112""")
    wave_id(a)
    a(f"""s_cmp_ge_u32 s2, 256
    s_cbranch_scc1 {name}_exit
    s_and_b32 s20, s2, 1
    s_lshl_b32 s20, s20, 3
    s_bfe_u32 s21, s2, 0x30003
    s_add_u32 s20, s20, s21
    s_bfe_u32 s21, s2, 0x20001
    s_lshl_b32 s21, s21, 2
    s_lshr_b32 s22, s2, 6
    s_add_u32 s21, s21, s22
    s_cmp_ge_u32 s21, 15
    s_cbranch_scc1 {name}_exit""")
    lane_common(a)
    a(f"""s_waitcnt lgkmcnt(0)
    s_cmp_ge_u32 s3, 4
    s_cbranch_scc0 {name}_comp""")
    a("s_sub_u32 s23, s3, 4")
    a("s_lshl_b32 s52, s23, 12\ns_mul_i32 s53, s23, 6144\ns_add_u32 s53, s53, 16384")
    a("s_mov_b32 s50, 128")
    if rotate:
        a("s_lshr_b32 s54, s2, 3\ns_add_u32 s54, s54, s2\ns_and_b32 s54, s54, 7")
    else:
        a("s_mov_b32 s54, 0")
    a(f"s_lshl_b32 s24, s20, 7\ns_lshl_b32 s25, s23, 5\ns_add_u32 s24, s24, s25")
    a(f"s_cmp_ge_u32 s21, 9\ns_cbranch_scc1 {name}_ldu")
    srd(a, 40, 4, 2048*1152)
    srd(a, 44, 6, 576*3456)
    loader_voff_kc(a, 10, 4, lambda i: a(f"v_lshrrev_b32 v30, 3, v1\nv_add_u32 v30, s24, v30\nv_add_u32 v30, {8*i}, v30"))
    loader_voff_w(a, 14, "s23", 3456)
    a("s_mul_i32 s25, s21, 384")
    for n in range(6): a(f"v_add_u32 v{14+n}, s25, v{14+n}")
    a(f"s_mov_b32 s51, {64*3456}\ns_branch {name}_ldgo")
    a(f"{name}_ldu:")
    srd(a, 40, 8, 2048*1152)
    a("""s_cmp_ge_u32 s23, 2
    s_cselect_b32 s44, s14, s12
    s_cselect_b32 s45, s15, s13""")
    a(f"s_mov_b32 s46, {576*1152}\ns_mov_b32 s47, 0x00020000")
    def urow(i):
        a(f"""v_bfe_u32 v30, v1, 3, 1
        v_lshlrev_b32 v30, 4, v30
        v_bfe_u32 v31, v1, 5, 1
        v_lshl_add_u32 v30, v31, 3, v30
        v_bfe_u32 v31, v1, 4, 1
        v_add_u32 v30, v30, v31
        v_add_u32 v30, s24, v30
        v_add_u32 v30, {2*i}, v30""")
    loader_voff_kc(a, 10, 4, urow)
    a("s_sub_u32 s25, s21, 9\ns_mul_i32 s25, s25, 96\ns_and_b32 s26, s23, 1\ns_mul_i32 s26, s26, 48\ns_add_u32 s25, s25, s26")
    loader_voff_kc(a, 14, 6, lambda i: a(f"v_lshrrev_b32 v30, 3, v1\nv_add_u32 v30, s25, v30\nv_add_u32 v30, {8*i}, v30"))
    a("s_mov_b32 s51, 128")
    a(f"{name}_ldgo:")
    loader(a, rotate, False)
    a(f"{name}_comp:")
    srd(a, 40, 16, WS_USED)
    a("s_and_b32 s24, s3, 1\ns_lshr_b32 s25, s3, 1")
    a("s_lshl_b32 s26, s24, 13")
    adr_kc(a, ADR, "s26")
    zero_acc(a, 96)
    a("s_lshl_b32 s27, s20, 2\ns_lshl_b32 s28, s24, 1\ns_add_u32 s27, s27, s28")
    a(f"s_cmp_ge_u32 s21, 9\ns_cbranch_scc1 {name}_cu")
    a("s_mul_i32 s29, s25, 3")
    adr_w(a, ADR + 4, "s29")
    def reads_xw(s, buf):
        return [rd128(frag(buf, 0), ADR + s, 0)] + reads_w(s, buf, ADR + 4)[:2] + [rd128(frag(buf, 1), ADR + s, 4096)] + reads_w(s, buf, ADR + 4)[2:]
    a(f"s_cmp_ge_u32 s21, 6\ns_cbranch_scc1 {name}_cv")
    a("s_mul_i32 s30, s21, 48\ns_mul_i32 s31, s25, 24\ns_add_u32 s30, s30, s31")
    a(f"s_mov_b32 s32, {PAIR_STRIDE}")
    for c in range(3):
        for g in range(4):
            d = EPI + 4 * c + g
            a(f"""v_add_u32 v28, s30, v3
            v_add_u32 v28, {8*c+2*g}, v28
            v_mul_u32_u24 v29, 57, v28
            v_lshrrev_b32 v29, 9, v29
            v_mul_u32_u24 v30, 9, v29
            v_sub_u32 v30, v28, v30
            v_mul_lo_u32 v29, v29, s32
            v_cmp_lt_u32 vcc, 4, v30
            s_nop 1
            v_subbrev_co_u32 v31, vcc, 0, v30, vcc
            v_lshrrev_b32 v28, 1, v31
            v_lshlrev_b32 v28, 9, v28
            v_and_b32 v31, 1, v31
            v_lshl_add_u32 v28, v31, 3, v28
            v_lshl_add_u32 v28, v2, 4, v28
            v_lshlrev_b32 v31, 3, v2
            v_add_u32 v31, 2048, v31
            v_cmp_eq_u32 vcc, 4, v30
            s_nop 1
            v_cndmask_b32 v28, v28, v31, vcc
            v_add_u32 v{d}, v28, v29""")
    compute_loop(a, 7, reads_xw, lambda buf: [mf(acc(mt, c), frag(buf, 2 + c), frag(buf, mt)) for c in range(3) for mt in range(2)])
    a(f"s_cmp_lt_u32 s21, 3\ns_cselect_b32 s33, {f2u(QSCALE)}, 1.0\ns_mul_i32 s34, s27, 2304")
    t = 0
    for mt in range(2):
        for c in range(3):
            for g in range(4):
                r = acc(mt, c) + 4 * g
                o = FR0 + 2 * (t % 16); t += 1
                for i in range(4): a(f"v_mul_f32 v{r+i}, s33, v{r+i}")
                a(f"v_cvt_pk_bf16_f32 v{o}, v{r}, v{r+1}\nv_cvt_pk_bf16_f32 v{o+1}, v{r+2}, v{r+3}")
                a(f"buffer_store_dwordx2 {vr(o,2)}, v{EPI+4*c+g}, s[40:43], s34 offen offset:{2304*mt}")
    endk(a)
    a(f"{name}_cv:")
    a("s_sub_u32 s30, s21, 6\ns_mul_i32 s30, s30, 192\ns_mul_i32 s31, s25, 96\ns_add_u32 s30, s30, s31")
    a(f"s_mov_b32 s32, {VH_STRIDE}")
    for c in range(3):
        a(f"""v_add_u32 v28, s30, v2
        v_add_u32 v28, {32*c}, v28
        v_mul_u32_u24 v29, 3641, v28
        v_lshrrev_b32 v29, 16, v29
        v_mul_u32_u24 v30, 18, v29
        v_sub_u32 v30, v28, v30
        v_mul_lo_u32 v29, v29, s32
        v_lshl_add_u32 v29, v30, 4, v29
        v_mul_u32_u24 v30, 304, v3
        v_add_u32 v{EPI+c}, v29, v30""")
    a(f"s_mul_i32 s34, s27, 1216\ns_add_u32 s34, s34, {VF_OFF}")
    a(f"""s_mul_i32 s35, s30, 3641
    s_lshr_b32 s35, s35, 16
    v_lshrrev_b32 v28, 3, v1
    v_add_u32 v28, s35, v28
    v_mul_u32_u24 v29, 18, v28
    v_add_u32 v29, 17, v29
    v_subrev_u32 v29, s30, v29
    v_mul_lo_u32 v28, v28, s32
    v_and_b32 v30, 7, v1
    v_mul_u32_u24 v30, 304, v30
    v_add_u32 v28, v28, v30
    v_add_u32 v28, 288, v28
    v_mov_b32 v30, {OOB}
    v_cmp_gt_u32 vcc, 96, v29
    s_nop 1
    v_cndmask_b32 v28, v30, v28, vcc
    v_mov_b32 v16, 0x3f803f80
    v_mov_b32 v17, 0x3f803f80
    v_mov_b32 v18, 0x3f803f80
    v_mov_b32 v19, 0x3f803f80
    buffer_store_dwordx4 v[16:19], v28, s[40:43], s34 offen""")
    compute_loop(a, 7, reads_xw, lambda buf: [mf(acc(mt, c), frag(buf, mt), frag(buf, 2 + c)) for c in range(3) for mt in range(2)])
    t = 0
    for mt in range(2):
        for c in range(3):
            for m in range(2):
                r = acc(mt, c) + 8 * m
                o = FR0 + 4 * (t % 8); t += 1
                for i in range(4): a(f"v_cvt_pk_bf16_f32 v{o+i}, v{r+2*i}, v{r+2*i+1}")
                a(f"buffer_store_dwordx4 {vr(o,4)}, v{EPI+c}, s[40:43], s34 offen offset:{1216*mt+608*m}")
    endk(a)
    a(f"{name}_cu:")
    a("s_mul_i32 s29, s25, 12288\ns_add_u32 s29, s29, 16384")
    adr_kc(a, ADR + 4, "s29")
    a(f"v_mul_u32_u24 v{EPI}, 18432, v3\nv_lshl_add_u32 v{EPI}, v2, 4, v{EPI}")
    def reads_u(s, buf):
        return [rd128(frag(buf, 0), ADR + s, 0), rd128(frag(buf, 2), ADR + 4 + s, 0), rd128(frag(buf, 1), ADR + s, 4096),
                rd128(frag(buf, 3), ADR + 4 + s, 4096), rd128(frag(buf, 4), ADR + 4 + s, 8192)]
    compute_loop(a, 8, reads_u, lambda buf: [mf(acc(mt, c), frag(buf, mt), frag(buf, 2 + c)) for c in range(3) for mt in range(2)])
    a(f"""s_mul_i32 s34, s27, 73728
    s_mul_i32 s35, s25, 36864
    s_add_u32 s34, s34, s35
    s_sub_u32 s35, s21, 9
    s_mul_i32 s35, s35, 1536
    s_add_u32 s34, s34, s35
    s_add_u32 s34, s34, {UF_OFF}""")
    t = 0
    for mt in range(2):
        for jj in range(2):
            a(f"s_add_u32 s35, s34, {73728*mt + 9216*jj}")
            for c in range(3):
                r = acc(mt, c) + 8 * jj
                o = FR0 + 4 * (t % 8); t += 1
                for i in range(4): a(f"v_cvt_pk_bf16_f32 v{o+i}, v{r+2*i}, v{r+2*i+1}")
                a(f"buffer_store_dwordx4 {vr(o,4)}, v{EPI}, s[40:43], s35 offen offset:{512*c}")
    endk(a)
    a(f"{name}_exit:\ns_endpgm")

def gen_k3(a, name):
    khead(a, name)
    KIDX[0] = 0 if 'k1' in name else 2
    asm.stamp(a, 0)
    a("""s_load_dwordx4 s[4:7], s[0:1], 16
    s_load_dwordx4 s[12:15], s[0:1], 64
    s_load_dwordx4 s[8:11], s[0:1], 88
    s_load_dwordx2 s[16:17], s[0:1], 112""")
    wave_id(a)
    a(f"""s_cmp_ge_u32 s2, 240
    s_cbranch_scc1 {name}_exit
    s_and_b32 s18, s2, 7
    s_lshr_b32 s19, s2, 3""")
    lane_common(a)
    a(f"""s_waitcnt lgkmcnt(0)
    s_cmp_ge_u32 s19, 6
    s_cbranch_scc1 {name}_c""")
    a("s_lshl_b32 s20, s18, 1\ns_and_b32 s21, s19, 1\ns_add_u32 s20, s20, s21\ns_lshr_b32 s21, s19, 1")
    a(f"s_cmp_ge_u32 s3, 4\ns_cbranch_scc0 {name}_ocomp")
    a("s_sub_u32 s23, s3, 4")
    srd(a, 40, 16, WS_USED)
    srd(a, 44, 4, 576*1152)
    a(f"s_lshl_b32 s24, s23, 16\ns_lshl_b32 s25, s20, 11\ns_add_u32 s24, s24, s25\ns_add_u32 s24, s24, {OF_OFF}")
    for n in range(4):
        a(f"v_lshlrev_b32 v{10+n}, 4, v1\nv_add_u32 v{10+n}, s24, v{10+n}\nv_add_u32 v{10+n}, {(n>>1)*32768 + (n&1)*1024}, v{10+n}")
    def rowmain():
        a("""v_lshrrev_b32 v28, 4, v30
        v_mul_u32_u24 v28, 18, v28
        v_bfe_u32 v31, v30, 3, 1
        v_lshl_add_u32 v28, v31, 2, v28
        v_bfe_u32 v31, v30, 2, 1
        v_lshl_add_u32 v28, v31, 3, v28
        v_and_b32 v31, 3, v30
        v_add_u32 v30, v28, v31""")
    def rowleft():
        a("""v_lshrrev_b32 v28, 1, v30
        v_mul_u32_u24 v28, 18, v28
        v_and_b32 v31, 1, v30
        v_add_u32 v30, v28, v31
        v_add_u32 v30, 16, v30""")
    loader_voff_w(a, 14, "s23", 1152, rowmain)
    loader_voff_w(a, 20, "s23", 1152, rowleft)
    a("s_mul_i32 s25, s21, 384")
    for n in range(12): a(f"v_add_u32 v{14+n}, s25, v{14+n}")
    a(f"s_mov_b32 s50, {8*32768}\ns_mov_b32 s51, {72*1152}\ns_branch {name}_ldgo")
    a(f"{name}_c:")
    a("""s_sub_u32 s19, s19, 6
    s_and_b32 s20, s18, 3
    s_lshl_b32 s20, s20, 3
    s_and_b32 s21, s19, 7
    s_add_u32 s20, s20, s21
    s_lshr_b32 s21, s18, 2
    s_mul_i32 s21, s21, 3
    s_lshr_b32 s22, s19, 3
    s_add_u32 s21, s21, s22""")
    a(f"s_cmp_ge_u32 s3, 4\ns_cbranch_scc0 {name}_ccomp")
    a("s_sub_u32 s23, s3, 4")
    srd(a, 40, 16, WS_USED)
    a("""s_cmp_ge_u32 s23, 2
    s_cselect_b32 s44, s14, s12
    s_cselect_b32 s45, s15, s13""")
    a(f"s_mov_b32 s46, {576*1152}\ns_mov_b32 s47, 0x00020000")
    a(f"""s_lshr_b32 s24, s23, 1
    s_mul_i32 s24, s24, {576*4096}
    s_and_b32 s25, s23, 1
    s_lshl_b32 s25, s25, 17
    s_add_u32 s24, s24, s25
    s_lshl_b32 s25, s20, 7
    s_add_u32 s24, s24, s25
    s_add_u32 s24, s24, {HT_OFF}
    v_lshrrev_b32 v30, 3, v1
    v_lshlrev_b32 v30, 12, v30
    v_bfe_u32 v31, v1, 4, 1
    v_lshlrev_b32 v31, 2, v31
    v_and_b32 v29, 7, v1
    v_xor_b32 v31, v31, v29
    v_lshl_add_u32 v30, v31, 4, v30
    v_add_u32 v30, s24, v30""")
    for n in range(4): a(f"v_add_u32 v{10+n}, {n*8*4096}, v30")
    a("s_mul_i32 s25, s21, 96\ns_and_b32 s26, s23, 1\ns_mul_i32 s26, s26, 48\ns_add_u32 s25, s25, s26")
    loader_voff_kc(a, 14, 6, lambda i: a(f"v_lshrrev_b32 v30, 3, v1\nv_add_u32 v30, s25, v30\nv_add_u32 v30, {8*i}, v30"))
    for n in range(6): a(f"v_add_u32 v{20+n}, 1024, v{14+n}")
    a(f"s_mov_b32 s50, {64*4096}\ns_mov_b32 s51, 128")
    a(f"{name}_ldgo:")
    a("s_lshl_b32 s52, s23, 12\ns_mul_i32 s53, s23, 6144\ns_add_u32 s53, s53, 16384\ns_mov_b32 s54, 0")
    loader(a, False, True)
    a(f"{name}_ocomp:")
    srd(a, 40, 10, 2048*4608)
    a("s_and_b32 s24, s3, 1\ns_lshr_b32 s25, s3, 1")
    a(f"s_lshl_b32 s26, s24, 10\nv_lshlrev_b32 v{ADR}, 11, v3\nv_lshl_add_u32 v{ADR}, v2, 4, v{ADR}\nv_add_u32 v{ADR}, s26, v{ADR}")
    a("s_mul_i32 s29, s25, 3")
    adr_w(a, ADR + 1, "s29")
    zero_acc(a, 96)
    def reads_o(s, buf):
        return [rd128(frag(buf, 0), ADR, 4096*s)] + reads_w(s, buf, ADR + 1)[:2] + [rd128(frag(buf, 1), ADR, 4096*s + 512)] + reads_w(s, buf, ADR + 1)[2:]
    a(f"v_mul_u32_u24 v{EPI}, {4*4608}, v3\nv_lshl_add_u32 v{EPI}, v2, 2, v{EPI}")
    compute_loop(a, 4, reads_o, lambda buf: [mf(acc(mt, c), frag(buf, mt), frag(buf, 2 + c)) for c in range(3) for mt in range(2)])
    a(f"""s_lshl_b32 s34, s20, 7
    s_lshl_b32 s35, s24, 6
    s_add_u32 s34, s34, s35
    s_mul_i32 s34, s34, 4608
    s_mul_i32 s35, s21, 768
    s_add_u32 s34, s34, s35
    s_mul_i32 s35, s25, 384
    s_add_u32 s34, s34, s35""")
    for mt in range(2):
        for r in range(16):
            a(f"s_add_u32 s35, s34, {(32*mt + 8*(r>>2) + (r&3))*4608}")
            for c in range(3):
                a(f"buffer_store_dword v{acc(mt,c)+r}, v{EPI}, s[40:43], s35 offen offset:{128*c}")
    endk(a)
    a(f"{name}_ccomp:")
    srd(a, 40, 10, 2048*4608)
    srd(a, 44, 6, 2048*1152)
    srd(a, 48, 8, 1152)
    a("s_and_b32 s24, s3, 1\ns_lshr_b32 s25, s3, 1")
    a(f"""s_lshl_b32 s26, s25, 13
    v_lshl_add_u32 v30, v3, 3, v4
    v_lshlrev_b32 v30, 7, v30
    v_add_u32 v30, v30, v5
    v_xor_b32 v31, s24, v6
    v_lshl_add_u32 v30, v31, 6, v30
    v_add_u32 v{ADR+4}, s26, v30""")
    a("s_mul_i32 s29, s25, 12288\ns_add_u32 s29, s29, 16384")
    adr_kc(a, ADR, "s29")
    zero_acc(a, 48)
    a("""s_lshl_b32 s30, s20, 6
    s_lshl_b32 s31, s24, 5
    s_add_u32 s30, s30, s31
    s_lshl_b32 s31, s25, 3
    s_add_u32 s30, s30, s31""")
    XD = 96
    a(f"""v_mul_u32_u24 v28, {2*1152}, v3
    v_lshl_add_u32 v28, v2, 1, v28
    s_mul_i32 s31, s30, 1152
    s_mul_i32 s32, s21, 192
    s_add_u32 s31, s31, s32
    v_lshlrev_b32 v29, 1, v2""")
    for c in range(3):
        a(f"buffer_load_ushort v{XD+24+c}, v29, s[48:51], s32 offen offset:{64*c}")
    for r in range(8):
        a(f"s_add_u32 s33, s31, {(4*(r>>2) + ((r&3)>>1) + 16*(r&1))*1152}")
        for c in range(3):
            a(f"buffer_load_ushort v{XD+8*c+r}, v28, s[44:47], s33 offen offset:{64*c}")
    def reads_c(s, buf):
        return [rdtr(frag(buf, 0), ADR + 4, (16*s)*128), rdtr(frag(buf, 0) + 2, ADR + 4, (16*s+4)*128)] + \
               [rd128(frag(buf, 2 + c), ADR + s, 4096*c) for c in range(3)]
    compute_loop(a, 5, reads_c, lambda buf: [mf(acc(0, c), frag(buf, 0), frag(buf, 2 + c)) for c in range(3)])
    a(f"""s_mul_i32 s33, s3, 6144
    s_add_u32 s33, s33, {2*SLOT}
    v_lshlrev_b32 v28, 4, v1
    v_add_u32 v29, s33, v28
    s_xor_b32 s33, s3, 2
    s_mul_i32 s33, s33, 6144
    s_add_u32 s33, s33, {2*SLOT}
    v_add_u32 v28, s33, v28
    v_mul_u32_u24 v{EPI}, {2*4608}, v3
    v_lshl_add_u32 v{EPI}, v2, 2, v{EPI}
    s_mul_i32 s34, s30, 4608
    s_mul_i32 s35, s21, 384
    s_add_u32 s34, s34, s35
    s_add_u32 s34, s34, 2304
    s_waitcnt vmcnt(0)""")
    for c in range(3):
        a(f"v_lshlrev_b32 v{XD+24+c}, 16, v{XD+24+c}")
    for c in range(3):
        for r in range(8):
            a(f"v_lshlrev_b32 v{XD+8*c+r}, 16, v{XD+8*c+r}")
    a(f"s_cmp_eq_u32 s25, 0\ns_cbranch_scc0 {name}_c1")
    for ri in range(2):
        if ri == 1: a(f"{name}_c1:")
        keep = 8 * ri; give = 8 * (1 - ri)
        for c in range(3):
            for q in range(2):
                a(f"ds_write_b128 v29, {vr(acc(0,c)+give+4*q,4)} offset:{(2*c+q)*1024}")
        for c in range(3):
            for r in range(8):
                a(f"v_fma_f32 v{acc(0,c)+keep+r}, v{XD+8*c+r}, v{XD+24+c}, v{acc(0,c)+keep+r}")
        a("s_waitcnt lgkmcnt(0)\ns_barrier")
        for c in range(3):
            for q in range(2):
                a(f"ds_read_b128 {vr(FR0+8*c+4*q,4)}, v28 offset:{(2*c+q)*1024}")
        a("s_waitcnt lgkmcnt(0)")
        for r in range(8):
            a(f"s_add_u32 s35, s34, {(4*(r>>2) + ((r&3)>>1) + 16*(r&1))*4608}")
            for c in range(3):
                a(f"v_add_f32 v{acc(0,c)+keep+r}, v{acc(0,c)+keep+r}, v{FR0+8*c+r}")
                a(f"buffer_store_dword v{acc(0,c)+keep+r}, v{EPI}, s[40:43], s35 offen offset:{128*c}")
        endk(a)
    a(f"{name}_exit:\ns_endpgm")
```

```python
import struct
class A:
    def __init__(self):
        self.l = []
        self.uid = 0
    def __call__(self, s):
        for x in s.strip("\n").split("\n"):
            x = x.strip()
            if not x: continue
            if x.endswith(":") or x.startswith("."):
                self.l.append(x)
            else:
                self.l.append("    " + x)
    def lab(self, p="L"):
        self.uid += 1
        return f"{p}_{self.uid}"
    def text(self):
        return "\n".join(self.l) + "\n"

def f2u(x): return struct.unpack("<I", struct.pack("<f", x))[0]
def vr(a, n):
    return f"v[{a}:{a+n-1}]" if n > 1 else f"v{a}"
def sr(a, n):
    return f"s[{a}:{a+n-1}]" if n > 1 else f"s{a}"
def srd(a, d, base, nbytes):
    a(f"""s_mov_b32 s{d}, s{base}
    s_mov_b32 s{d+1}, s{base+1}
    s_mov_b32 s{d+2}, {nbytes}
    s_mov_b32 s{d+3}, 0x00020000""")
def kdesc(name, vgpr, sgpr=102):
    acc = (vgpr + 3) // 4 * 4
    return f""".p2align 6
.amdhsa_kernel {name}
  .amdhsa_next_free_vgpr {vgpr}
  .amdhsa_next_free_sgpr {sgpr}
  .amdhsa_accum_offset {acc}
  .amdhsa_group_segment_fixed_size 0
  .amdhsa_kernarg_size 120
  .amdhsa_user_sgpr_count 2
  .amdhsa_user_sgpr_kernarg_segment_ptr 1
  .amdhsa_system_sgpr_workgroup_id_x 1
.end_amdhsa_kernel
"""
def khead(a, name):
    a(f""".globl {name}
.p2align 8
.type {name},@function
{name}:""")

STAMP = False
STAMP_OFF = 32 << 20
NST = 12
def stamp_init(a):
    if not STAMP: return
    for i in range(2*NST): a(f"s_mov_b32 s{70+i}, 0")
def stamp(a, idx):
    if not STAMP: return
    a(f"""s_memrealtime s[98:99]
    s_memtime s[100:101]
    s_waitcnt lgkmcnt(0)
    s_mov_b32 s{70+2*idx}, s98
    s_mov_b32 s{71+2*idx}, s100""")
def stamp_flush(a, wsreg):
    if not STAMP: return
    a(f"""s_mov_b32 s96, s{wsreg}
    s_mov_b32 s97, s{wsreg+1}
    s_mov_b32 s98, 0x4000000
    s_mov_b32 s99, 0x00020000
    s_lshl_b32 s69, s2, 3
    s_add_u32 s69, s69, s3
    s_lshl_b32 s69, s69, 7
    s_add_u32 s69, s69, {STAMP_OFF}
    v_mov_b32 v0, 0
    s_mov_b64 exec, 1""")
    for i in range(2*NST):
        a(f"v_mov_b32 v1, s{70+i}\nbuffer_store_dword v1, v0, s[96:99], s69 offen offset:{4*i}")
```

```python
from asm import *
import asm

GS = 32768
QF_OFF = 0
KF_OFF = 72 * GS
VF_OFF = 144 * GS
VG = 9216
OF_OFF = VF_OFF + 256 * VG
UF_OFF = OF_OFF + 72 * GS
HT_OFF = UF_OFF + 64 * 73728
MB_QKV = HT_OFF + 2 * 576 * 4096
MB_U = MB_QKV + 32 * 384
MB_H = MB_U + 48 * 128
MB_O = MB_H + 64 * 128
MB_S = MB_O + 48 * 128
WS_USED = MB_S + 8 * 384
NONCE_LDS = 163840 - 16
HTOUCH = True
OOB = 0x40000000
SLOT = 40960
UNIT = 20480
QSCALE = (18 ** -0.5) * 1.4426950408889634
LOG2E = 1.4426950408889634
SC = "sc1"
NAME = "concat_heads__softmax_full_mha__ssm_conv_s5__prompt_kernel"
WS = "s[36:39]"; DBG = "s[52:55]"

def mf(d, x, y, c=None):
    return f"v_mfma_f32_32x32x16_bf16 {vr(d,16)}, {vr(x,4)}, {vr(y,4)}, {vr(d,16) if c is None else c}"
def rd128(dst, adr, off): return f"ds_read_b128 {vr(dst,4)}, v{adr} offset:{off}"
def rdtr(dst, adr, off): return f"ds_read_b64_tr_b16 {vr(dst,2)}, v{adr} offset:{off}"

def endk(a, idx=11):
    if asm.STAMP: a("s_waitcnt vmcnt(0)")
    stamp(a, idx)
    asm.stamp_dbg(a)
    if not asm.DBGSTAMP: stamp_flush(a, 32)
    a("s_endpgm")

def poll(a, soff, nlanes, wide=False, tmp="s[66:67]", cnt="s68"):
    lp = a.lab("L_poll"); dn = a.lab("L_polld")
    a(f"""v_lshlrev_b32 v26, {3 if wide else 2}, v1
    s_mov_b32 {cnt}, 0x40000
    s_mov_b32 exec_lo, {hex(((1 << nlanes) - 1) & 0xffffffff)}
    s_mov_b32 exec_hi, {hex(((1 << nlanes) - 1) >> 32)}
    {lp}:
    buffer_load_dword{"x2 v[24:25]" if wide else " v24"}, v26, {WS}, {soff} offen sc1
    s_waitcnt vmcnt(0)
    v_cmp_eq_u32 vcc, s94, v24""")
    if wide: a(f"v_cmp_eq_u32 {tmp}, s94, v25\ns_and_b64 vcc, vcc, {tmp}")
    a(f"""s_cmp_eq_u64 vcc, exec
    s_cbranch_scc1 {dn}
    s_sleep 2
    s_sub_u32 {cnt}, {cnt}, 1
    s_cmp_lg_u32 {cnt}, 0
    s_cbranch_scc1 {lp}
    {dn}:
    s_mov_b64 exec, -1""")

def post(a, voff, soff):
    a(f"v_mov_b32 v27, s94\nbuffer_store_dword v27, v{voff}, {WS}, {soff} offen sc1")

def post_strided(a, n, soff):
    a(f"""v_lshlrev_b32 v26, 7, v1
    v_cmp_gt_u32 vcc, {n}, v1
    v_mov_b32 v27, {OOB}
    s_nop 0
    v_cndmask_b32 v26, v27, v26, vcc""")
    post(a, 26, soff)

def issue(a, slot, va, vb, sa, sb, sc="", part=None):
    lst = []
    for n in range(4):
        lst.append(f"s_add_u32 m0, s56, {slot*SLOT + n*1024}\ns_nop 0\nbuffer_load_dwordx4 v{va+n}, s[40:43], {sa} offen {sc} lds")
    for n in range(6):
        lst.append(f"s_add_u32 m0, s57, {slot*SLOT + n*1024}\ns_nop 0\nbuffer_load_dwordx4 v{vb+n}, s[44:47], {sb} offen lds")
    if part: lst = lst[part[0]:part[1]]
    for x in lst: a(x)

def compute_loop(a, adr, nadr, reads, mfmas, nchunks=9, nslots=4, hook=None):
    a(f"s_mov_b32 s60, 0\ns_mov_b32 s61, 0\ns_mov_b32 s64, {SLOT}\ns_mov_b32 s65, {(-(nslots-1)*SLOT) & 0xffffffff}")
    for r in reads(0, 0): a(r)
    loop = a.lab("L_gl"); last = a.lab("L_gl_last")
    a(f"{loop}:")
    def interleave(ms, rs):
        n = len(ms)
        per = -(-len(rs) // max(1, n - 2)) if n > 3 else -(-len(rs) // max(1, n - 1))
        k = 0
        for m in ms:
            a(m)
            for x in rs[k:k+per]: a(x)
            k += per
        for x in rs[k:]: a(x)
    for s in range(3):
        a("s_waitcnt lgkmcnt(0)")
        interleave(mfmas(s & 1), reads(s + 1, (s + 1) & 1))
    a("s_waitcnt lgkmcnt(0)")
    a(f"s_cmp_eq_u32 s60, {nchunks-1}\ns_cbranch_scc1 {last}")
    ms = mfmas(1)
    a(ms[0])
    a(f"""s_add_u32 s61, s61, 1
    s_cmp_eq_u32 s61, {nslots}
    s_cselect_b32 s62, s65, s64
    s_cselect_b32 s61, 0, s61""")
    if hook: hook()
    a("s_barrier")
    for k in range(nadr): a(f"v_add_u32 v{adr+k}, s62, v{adr+k}")
    interleave(ms[1:], reads(0, 0))
    a(f"s_add_u32 s60, s60, 1\ns_branch {loop}")
    a(f"{last}:")
    for m in ms: a(m)
    a("s_nop 15\ns_nop 3")

def adr_kc(a, dst, sbase):
    a(f"v_lshlrev_b32 v30, 7, v2\nv_add_u32 v30, {sbase}, v30")
    for s in range(4):
        a(f"v_or_b32 v31, {2*s}, v3\nv_xor_b32 v31, v31, v7\nv_lshl_add_u32 v{dst+s}, v31, 4, v30")

def voff_kc(a, dst, n, rowstep):
    a(f"""v_lshrrev_b32 v31, 4, v1
    v_and_b32 v29, 7, v1
    v_xor_b32 v31, v31, v29
    v_lshl_add_u32 v{dst}, v31, 4, v30
    v_xor_b32 v31, 64, v{dst}""")
    for i in range(1, n):
        a(f"v_add_u32 v{dst+i}, {i*rowstep*1152}, v{31 if i & 1 else dst}")

S0 = 32; OA = 96; P0 = 128; QM = 144; QL = 152; KM = 156; KL = 164; VB = 168
VAK = 10; VAL = 11; VAV = 12
GROUPS = [1, 1, 6]
ACC = 32; FR0 = 128; ADR = 8; EPI = 168
ADR3 = 184; ACC3 = 192
def frag(buf, k): return FR0 + 20 * buf + 4 * k
def acc(mt, c): return ACC + 16 * (3 * mt + c)

def gen(a):
    name = NAME
    khead(a, name)
    a("""s_load_dwordx16 s[4:19], s[0:1], 0
    s_load_dwordx8 s[20:27], s[0:1], 64
    s_load_dwordx4 s[28:31], s[0:1], 96
    s_load_dwordx2 s[32:33], s[0:1], 112
    v_lshrrev_b32 v1, 6, v0
    s_cmp_ge_u32 s2, 256
    v_readfirstlane_b32 s3, v1
    s_cbranch_scc1 L_exit""")
    stamp_init(a); stamp(a, 0)
    a("""s_and_b32 s34, s2, 7
    s_lshr_b32 s35, s2, 3
    s_and_b32 s58, s2, 1
    s_lshl_b32 s58, s58, 3
    s_and_b32 s59, s35, 7
    s_add_u32 s58, s58, s59
    s_lshr_b32 s59, s34, 1
    s_lshl_b32 s59, s59, 2
    s_lshr_b32 s60, s2, 6
    s_add_u32 s59, s59, s60
    v_and_b32 v1, 63, v0
    s_cmp_ge_u32 s3, 4
    s_cbranch_scc0 L_comp""")
    a("""s_sub_u32 s69, s3, 4
    s_lshl_b32 s56, s69, 12
    s_mul_i32 s57, s69, 6144
    s_add_u32 s57, s57, 16384
    s_lshl_b32 s60, s58, 2
    s_add_u32 s60, s60, s69
    s_mul_i32 s60, s60, 36864
    s_add_u32 s63, s35, s2
    s_and_b32 s63, s63, 7
    s_cmp_ge_u32 s59, 9
    s_cbranch_scc1 L_ldu""")
    a("v_lshrrev_b32 v30, 3, v1\nv_mul_u32_u24 v30, 1152, v30")
    voff_kc(a, 10, 4, 8)
    for n in range(3):
        a(f"""v_add_u32 v28, {64*n}, v1
        v_mul_u32_u24 v30, 2731, v28
        v_lshrrev_b32 v30, 16, v30
        v_mul_u32_u24 v29, 24, v30
        v_sub_u32 v29, v28, v29
        v_bfe_u32 v31, v30, 1, 1
        v_lshlrev_b32 v31, 2, v31
        v_xor_b32 v29, v29, v31
        v_mul_u32_u24 v30, 3456, v30
        v_lshl_add_u32 v{14+n}, v29, 4, v30
        v_add_u32 v{17+n}, {8*3456}, v{14+n}""")
    a(f"""s_mul_i32 s61, s69, {16*3456}
    s_mul_i32 s62, s59, 384
    s_add_u32 s61, s61, s62
    s_mov_b32 s62, {64*3456}
    s_waitcnt lgkmcnt(0)""")
    srd(a, 40, 4, 2048*1152)
    srd(a, 44, 6, 576*3456)
    a("s_branch L_ldgo\nL_ldu:")
    a("""v_bfe_u32 v30, v1, 3, 1
    v_lshlrev_b32 v30, 4, v30
    v_bfe_u32 v31, v1, 5, 1
    v_lshl_add_u32 v30, v31, 3, v30
    v_bfe_u32 v31, v1, 4, 1
    v_add_u32 v30, v30, v31
    v_mul_u32_u24 v30, 1152, v30""")
    voff_kc(a, 10, 4, 2)
    a("v_lshrrev_b32 v30, 3, v1\nv_mul_u32_u24 v30, 1152, v30")
    voff_kc(a, 14, 6, 8)
    a(f"""s_sub_u32 s61, s59, 9
    s_lshl_b32 s61, s61, 1
    s_and_b32 s62, s69, 1
    s_add_u32 s61, s61, s62
    s_mul_i32 s61, s61, {48*1152}
    s_mov_b32 s62, 128
    s_waitcnt lgkmcnt(0)
    s_cmp_ge_u32 s69, 2
    s_cselect_b32 s44, s18, s16
    s_cselect_b32 s45, s19, s17
    s_mov_b32 s46, {576*1152}
    s_mov_b32 s47, 0x00020000""")
    srd(a, 40, 10, 2048*1152)
    a("L_ldgo:")
    srd(a, 36, 32, WS_USED)
    srd(a, 52, 30, 256)
    a("s_cmp_ge_u32 s59, 15\ns_cbranch_scc1 L_h_p1d")
    stamp(a, 1)
    def p1_soff():
        a("""s_lshl_b32 s48, s63, 7
        s_add_u32 s48, s48, s60
        s_mul_i32 s49, s63, s62
        s_add_u32 s49, s49, s61
        s_add_u32 s63, s63, 1
        s_cmp_eq_u32 s63, 9
        s_cselect_b32 s63, 0, s63""")
    p1_soff(); issue(a, 0, 10, 14, "s48", "s49")
    p1_soff(); issue(a, 1, 10, 14, "s48", "s49", part=(0, 4))
    a("s_waitcnt vmcnt(4)")
    stamp(a, 2)
    a("s_barrier")
    issue(a, 1, 10, 14, "s48", "s49", part=(4, 10))
    issued = 2
    for i in range(9):
        if i > 0:
            a(f"s_waitcnt vmcnt({10*(issued-1-i)})\ns_barrier")
        lim = min(9, i + 4) if i > 0 else 3
        while issued < lim:
            p1_soff(); issue(a, issued % 4, 10, 14, "s48", "s49"); issued += 1
    a("L_h_p1d:")
    a(f"""v_and_b32 v28, 31, v1
    v_mul_u32_u24 v29, 9, v28
    v_lshrrev_b32 v29, 2, v29
    v_lshrrev_b32 v30, 5, v1
    v_lshl_add_u32 v29, v30, 1, v29
    v_mul_u32_u24 v29, 43, v29
    v_lshrrev_b32 v29, 10, v29
    v_mul_u32_u24 v28, 384, v28
    v_lshl_add_u32 v28, v30, 6, v28
    s_mul_i32 s60, s59, 43
    s_lshr_b32 s60, s60, 7
    s_mul_i32 s61, s60, 3
    s_sub_u32 s61, s59, s61
    v_cmp_eq_u32 vcc, s61, v29
    v_mov_b32 v30, {OOB}
    s_lshl_b32 s48, s60, 7
    v_cndmask_b32 v9, v30, v28, vcc
    s_lshl_b32 s61, s58, 2
    s_add_u32 s48, s48, s61
    s_add_u32 s48, s48, {MB_QKV}
    s_sub_u32 s49, s59, 9
    s_lshl_b32 s49, s49, 10
    s_add_u32 s49, s49, s61
    s_add_u32 s49, s49, {MB_U}
""")
    head_geom(a)
    a(f"s_mul_i32 s50, s40, 384\ns_add_u32 s50, s50, {MB_QKV}")
    a(f"s_mul_i32 s95, s95, 768\ns_lshl_b32 s60, s40, 2\ns_add_u32 s95, s95, s60\ns_add_u32 s95, s95, {MB_O}")
    a(f"""v_and_b32 v2, 31, v0
    v_bfe_u32 v3, v0, 5, 1
    v_lshlrev_b32 v10, 15, v3
    v_lshl_add_u32 v10, v2, 4, v10
    v_lshlrev_b32 v11, 4, v1
    s_lshl_b32 s60, s43, 15
    s_lshl_b32 s64, s69, 10
    s_add_u32 s60, s60, s64
    s_add_u32 s60, s60, {KF_OFF}
    s_add_u32 s61, s44, s64
    s_add_u32 s61, s61, {KF_OFF}
    s_mul_i32 s62, s40, 288
    s_add_u32 s62, s62, {VF_OFF}
    s_and_b32 s65, s69, 1
    s_lshl_b32 s65, s65, 10
    s_lshl_b32 s66, s69, 11
    s_lshl_b32 s67, s69, 9
    v_lshlrev_b32 v12, 3, v1
    v_add_u32 v12, s67, v12""")
    for e in range(3):
        a(f"""s_lshr_b32 s51, {"s64" if e < 2 else "s65"}, 4
        v_add_u32 v28, s51, v1
        v_add_u32 v28, {256*e}, v28
        v_mul_u32_u24 v29, 3450, v28
        v_lshrrev_b32 v29, 16, v29
        v_mul_u32_u24 v30, 19, v29
        v_sub_u32 v30, v28, v30
        v_cmp_gt_u32 vcc, 18, v30
        v_cmp_gt_u32 s[{40+2*e}:{41+2*e}], 32, v29
        v_mul_u32_u24 v29, {VG}, v29
        v_lshl_add_u32 v{14+e}, v30, 4, v29
        s_and_b64 s[{40+2*e}:{41+2*e}], s[{40+2*e}:{41+2*e}], vcc""")
    a("""v_lshrrev_b32 v30, 3, v1
    v_lshlrev_b32 v30, 12, v30
    v_bfe_u32 v31, v1, 4, 1
    v_lshlrev_b32 v31, 2, v31
    v_and_b32 v29, 7, v1
    v_xor_b32 v31, v31, v29
    v_lshl_add_u32 v160, v31, 4, v30""")
    for n in range(1, 4): a(f"v_add_u32 v{160+n}, {n*8*4096}, v160")
    a("v_lshrrev_b32 v30, 3, v1\nv_mul_u32_u24 v30, 1152, v30")
    voff_kc(a, 164, 6, 8)
    for n in range(4): a(f"v_lshlrev_b32 v{170+n}, 4, v1\nv_add_u32 v{170+n}, {n*GS}, v{170+n}")
    a("s_and_b32 s51, s69, 1\ns_mul_i32 s51, s51, 384")
    for n in range(6):
        a(f"""v_add_u32 v28, s51, v1
        v_add_u32 v28, {64*n}, v28
        v_mul_u32_u24 v30, 5462, v28
        v_lshrrev_b32 v30, 16, v30
        v_mul_u32_u24 v29, 12, v30
        v_sub_u32 v29, v28, v29
        v_lshrrev_b32 v28, 4, v30
        v_mul_u32_u24 v28, 18, v28
        v_bfe_u32 v31, v30, 3, 1
        v_lshl_add_u32 v28, v31, 2, v28
        v_bfe_u32 v31, v30, 2, 1
        v_lshl_add_u32 v28, v31, 3, v28
        v_and_b32 v31, 3, v30
        v_add_u32 v28, v28, v31
        v_mul_u32_u24 v28, 1152, v28
        v_lshl_add_u32 v{174+n}, v29, 4, v28
        v_lshrrev_b32 v28, 1, v30
        v_mul_u32_u24 v28, 18, v28
        v_and_b32 v31, 1, v30
        v_add_u32 v28, v28, v31
        v_add_u32 v28, 16, v28
        v_mul_u32_u24 v28, 1152, v28
        v_lshl_add_u32 v{180+n}, v29, 4, v28""")
    a("v_and_b32 v28, 31, v1\nv_lshrrev_b32 v29, 5, v1\nv_lshl_add_u32 v28, v29, 6, v28\nv_lshlrev_b32 v186, 12, v28\nv_lshlrev_b32 v187, 7, v1")
    a(f"v_mov_b32 v28, {NONCE_LDS}")
    stamp(a, 3)
    a("""s_barrier
    ds_read_b32 v29, v28
    s_waitcnt lgkmcnt(0)
    v_readfirstlane_b32 s94, v29
    s_cmp_lg_u32 s69, 0
    s_cbranch_scc1 L_h_p2
    s_cmp_ge_u32 s59, 9
    s_cbranch_scc1 L_h_sigu""")
    post(a, 9, "s48")
    a("s_branch L_h_p2\nL_h_sigu:\ns_cmp_ge_u32 s59, 15\ns_cbranch_scc1 L_h_p2")
    post_strided(a, 8, "s49")
    a("L_h_p2:")
    a(f"""s_mul_i32 s48, s69, {2*UNIT}
    v_mul_u32_u24 v28, {UNIT}, v3
    v_mul_u32_u24 v29, 304, v2
    v_add3_u32 v28, v28, v29, s48
    v_mov_b32 v20, 0x3f803f80
    v_mov_b32 v21, 0x3f803f80
    v_mov_b32 v22, 0x3f803f80
    v_mov_b32 v23, 0x3f803f80
    ds_write_b128 v28, v[20:23] offset:{10240+288}""")
    a("s_cmp_lg_u32 s69, 0\ns_cbranch_scc1 L_h_kv")
    poll(a, "s50", 48, True, "s[46:47]")
    a("L_h_kv:")
    stamp(a, 4)
    a("s_barrier")
    def unit(u):
        a(f"s_add_u32 s48, s61, {u*4096}\nbuffer_load_dwordx2 {vr(32+2*u,2)}, v11, {WS}, s48 offen {SC}")
        for e in range(2):
            a(f"s_add_u32 m0, s66, {u*UNIT + e*1024}\ns_add_u32 s48, s60, {u*4096 + e*512}\nbuffer_load_dwordx4 v10, {WS}, s48 offen {SC} lds")
        a(f"s_add_u32 s48, s62, {u*32*VG}")
        for e in range(3):
            a(f"s_add_u32 m0, {'s64' if e < 2 else 's65'}, {u*UNIT + 10240 + e*4096}\ns_mov_b64 exec, s[{40+2*e}:{41+2*e}]\nbuffer_load_dwordx4 v{14+e}, {WS}, s48 offen {SC} lds")
        a("s_mov_b64 exec, -1")
    def unit_fin(us):
        for u in us:
            lo = u*UNIT + 8192
            if lo > 65535 - 2048:
                a(f"v_add_u32 v13, {lo}, v12\nds_write_b64 v13, {vr(32+2*u,2)}")
            else:
                a(f"ds_write_b64 v12, {vr(32+2*u,2)} offset:{lo}")
        a("s_waitcnt lgkmcnt(0)")
    g0, g1, g2 = GROUPS
    for u in range(g0 + g1): unit(u)
    a(f"s_waitcnt vmcnt({6*g1})"); unit_fin(range(g0))
    stamp(a, 5)
    a("s_barrier")
    for u in range(g0 + g1, 8): unit(u)
    a(f"s_waitcnt vmcnt({6*g2})"); unit_fin(range(g0, g0 + g1)); a("s_barrier")
    a("s_waitcnt vmcnt(0)"); unit_fin(range(g0 + g1, 8))
    gen_scan_load(a)
    a("L_h_scanl:\ns_barrier")
    stamp(a, 6)
    a("s_cmp_ge_u32 s60, 576\ns_cbranch_scc1 L_h_scand\ns_setprio 3")
    gen_scan(a)
    a("L_h_scand:\ns_setprio 3")
    stamp(a, 7)
    gen_prefetch(a)
    a(f"""s_lshl_b32 s60, s35, 2
    s_add_u32 s60, s60, s69
    s_cmp_eq_u32 s60, 127
    s_cbranch_scc0 L_h_noagg
    s_mul_i32 s60, s34, 384
    s_add_u32 s60, s60, {MB_S}""")
    poll(a, "s60", 36, True)
    a(f"s_lshl_b32 s60, s34, 2\ns_add_u32 s60, s60, {MB_H}")
    post_strided(a, 64, "s60")
    a("L_h_noagg:")
    a("s_cmp_ge_u32 s35, 24\ns_cbranch_scc1 L_h_nop3")
    p3_geom(a)
    a(f"""s_lshr_b32 s60, s69, 1
    s_mul_i32 s60, s60, {576*4096}
    s_and_b32 s61, s69, 1
    s_lshl_b32 s62, s61, 17
    s_add_u32 s60, s60, s62
    s_and_b32 s62, s58, 3
    s_lshl_b32 s62, s62, 10
    s_add_u32 s60, s60, s62
    s_lshr_b32 s62, s58, 2
    s_lshl_b32 s62, s62, 7
    s_add_u32 s60, s60, s62
    s_add_u32 s60, s60, {HT_OFF}
    s_lshl_b32 s62, s59, 1
    s_add_u32 s61, s61, s62
    s_mul_i32 s61, s61, {48*1152}
    s_cmp_ge_u32 s69, 2
    s_cselect_b32 s44, s22, s20
    s_cselect_b32 s45, s23, s21
    s_mov_b32 s46, {576*1152}
    s_mov_b32 s47, 0x00020000""")
    srd(a, 40, 32, WS_USED)
    a(f"s_and_b32 s62, s2, 63\ns_lshl_b32 s62, s62, 7\ns_add_u32 s62, s62, {MB_H}")
    poll(a, "s62", 8)
    stamp(a, 8)
    if HTOUCH:
        for q in range(3):
            a(f"s_add_u32 s48, s60, {(3+2*q)*64*4096}\nbuffer_load_dword v{56+q}, v186, {WS}, s48 offen {SC}")
    a("s_barrier")
    slots = [0,1,2,3,0,1,2,3,0, 1,2,3,1,2]
    def p3_issue(s):
        if s < 9:
            a(f"s_add_u32 s48, s60, {s*64*4096}\ns_add_u32 s49, s61, {s*128}")
            issue(a, slots[s], 160, 164, "s48", "s49", SC)
            return
        if s == 9:
            stamp(a, 9)
            srd(a, 44, 8, 576*1152)
            a(f"""s_lshr_b32 s62, s69, 1
            s_and_b32 s63, s69, 1
            s_lshl_b32 s60, s63, 17
            s_lshl_b32 s63, s58, 10
            s_add_u32 s60, s60, s63
            s_add_u32 s60, s60, {OF_OFF}
            s_add_u32 s50, s60, {64*GS}
            s_lshl_b32 s63, s62, 20
            s_add_u32 s60, s60, s63
            s_mul_i32 s51, s59, 192
            s_mul_i32 s61, s62, {4*72*1152}
            s_add_u32 s61, s61, s51
            s_cmp_eq_u32 s62, 0
            s_cselect_b32 s50, s50, {OOB}
            s_cselect_b32 s51, s51, {OOB}""")
        q = s - 9
        if q < 4:
            a(f"s_add_u32 s48, s60, {q*8*GS}\ns_add_u32 s49, s61, {q*72*1152}")
            issue(a, slots[s], 170, 174, "s48", "s49", SC)
        else:
            issue(a, slots[s], 170, 180, "s50", "s51", SC)
    for s in range(3): p3_issue(s)
    issued = 3
    extra = 0
    for i in range(14):
        if i == 9:
            a("s_barrier\ns_barrier")
        a(f"s_waitcnt vmcnt({10*(issued-1-i)})\ns_barrier")
        if i == 1:
            a("s_cmp_lg_u32 s69, 0\ns_cbranch_scc1 L_h_nosig")
            post_strided(a, 6, "s95")
            a("L_h_nosig:")
        while issued < 14:
            s = issued
            prev = max([p for p in range(s) if slots[p] == slots[s]], default=-1)
            if prev + 1 <= i: p3_issue(s); issued += 1
            else: break
    endk(a)
    a("L_h_nop3:\ns_barrier\ns_barrier")
    a("s_cmp_lg_u32 s69, 0\ns_cbranch_scc1 L_h_end")
    post_strided(a, 6, "s95")
    a("L_h_end:")
    endk(a)
    a("L_comp:")
    a("""v_and_b32 v2, 31, v0
    v_bfe_u32 v3, v0, 5, 1
    v_bfe_u32 v4, v0, 2, 2
    v_bfe_u32 v5, v0, 4, 1
    v_lshlrev_b32 v5, 5, v5
    v_and_b32 v6, 3, v0
    v_lshl_add_u32 v5, v6, 3, v5
    v_bfe_u32 v6, v0, 3, 1
    v_bfe_u32 v7, v0, 1, 3
    s_and_b32 s56, s3, 1
    s_lshr_b32 s57, s3, 1
    s_waitcnt lgkmcnt(0)""")
    srd(a, 36, 32, WS_USED)
    srd(a, 52, 30, 256)
    a(f"""s_cmp_lg_u32 s3, 0
    s_cbranch_scc1 L_c_nn
    s_memrealtime s[60:61]
    s_waitcnt lgkmcnt(0)
    s_or_b32 s60, s60, 1
    s_mov_b64 exec, 1
    v_mov_b32 v20, s60
    v_mov_b32 v21, 0
    v_mov_b32 v22, s60
    buffer_atomic_cmpswap v[20:21], v21, {DBG}, 0 offen sc0 sc1
    s_mov_b64 exec, -1
    L_c_nn:""")
    a("s_cmp_ge_u32 s59, 15\ns_cbranch_scc1 L_c_p1d")
    a("s_lshl_b32 s66, s56, 13")
    adr_kc(a, ADR, "s66")
    for i in range(96): a(f"v_mov_b32 v{ACC+i}, 0")
    a("s_lshl_b32 s67, s58, 2\ns_lshl_b32 s68, s56, 1\ns_add_u32 s67, s67, s68")
    a("s_cmp_ge_u32 s59, 9\ns_cbranch_scc1 L_cu")
    def adr_w(inrow):
        a(f"v_lshl_add_u32 v30, v3, 3, v4\nv_mul_u32_u24 v30, 384, v30\nv_add_u32 v30, v30, v{inrow}\ns_mul_i32 s66, s57, 3")
        for c in range(3):
            a(f"s_add_u32 s63, s66, {c}\nv_xor_b32 v31, s63, v6\nv_lshl_add_u32 v{ADR+4+c}, v31, 6, v30")
    def reads_w(s, buf):
        return [rdtr(frag(buf, 2 + c) + 2 * e, ADR + 4 + c, 16384 + (16 * s + 4 * e) * 384) for c in range(3) for e in range(2)]
    def reads_xw(s, buf):
        w = reads_w(s, buf)
        return [rd128(frag(buf, 0), ADR + s, 0)] + w[:2] + [rd128(frag(buf, 1), ADR + s, 4096)] + w[2:]
    def p1_end():
        a("s_branch L_c_p1d")
    def p1_start():
        stamp(a, 1); a("s_barrier"); stamp(a, 2)
    a("s_cmp_ge_u32 s59, 6\ns_cbranch_scc1 L_cv")
    a("""v_bfe_u32 v28, v0, 4, 1
    v_lshlrev_b32 v28, 5, v28
    v_and_b32 v29, 1, v0
    v_lshl_add_u32 v28, v29, 4, v28
    v_bfe_u32 v29, v0, 1, 1
    v_lshl_add_u32 v28, v29, 3, v28""")
    adr_w(28)
    a(f"v_lshlrev_b32 v{EPI}, 15, v3\nv_lshl_add_u32 v{EPI}, v2, 4, v{EPI}")
    p1_start()
    compute_loop(a, ADR, 7, reads_xw, lambda buf: [mf(acc(mt, c), frag(buf, 2 + c), frag(buf, mt)) for c in range(3) for mt in range(2)])
    stamp(a, 3)
    a(f"""s_cmp_lt_u32 s59, 3
    s_cselect_b32 s66, {f2u(QSCALE)}, 1.0
    s_lshl_b32 s68, s59, 1
    s_add_u32 s68, s68, s57
    s_mul_i32 s68, s68, {12*GS}
    s_lshl_b32 s67, s67, 9
    s_add_u32 s68, s68, s67""")
    t = 0
    for c in range(3):
        for m in range(2):
            a(f"s_add_u32 s63, s68, {(4*c+2*m)*GS}")
            for mt in range(2):
                r = acc(mt, c) + 8 * m
                o = FR0 + 4 * (t % 8); t += 1
                for i in range(8): a(f"v_mul_f32 v{r+i}, s66, v{r+i}")
                for i in range(4): a(f"v_cvt_pk_bf16_f32 v{o+i}, v{r+2*i}, v{r+2*i+1}")
                a(f"buffer_store_dwordx4 {vr(o,4)}, v{EPI}, {WS}, s63 offen offset:{512*mt} {SC}")
    p1_end()
    a("L_cv:")
    adr_w(5)
    a(f"v_mul_u32_u24 v{EPI}, {VG}, v3\nv_lshl_add_u32 v{EPI}, v2, 4, v{EPI}")
    p1_start()
    compute_loop(a, ADR, 7, reads_xw, lambda buf: [mf(acc(mt, c), frag(buf, mt), frag(buf, 2 + c)) for c in range(3) for mt in range(2)])
    stamp(a, 3)
    a(f"""s_mul_i32 s68, s67, {4*VG}
    s_sub_u32 s63, s59, 6
    s_lshl_b32 s63, s63, 1
    s_add_u32 s63, s63, s57
    s_mul_i32 s63, s63, 1536
    s_add_u32 s68, s68, s63
    s_add_u32 s68, s68, {VF_OFF}""")
    t = 0
    for mt in range(2):
        for m in range(2):
            a(f"s_add_u32 s63, s68, {(4*mt + 2*m)*VG}")
            for c in range(3):
                r = acc(mt, c) + 8 * m
                o = FR0 + 4 * (t % 8); t += 1
                for i in range(4): a(f"v_cvt_pk_bf16_f32 v{o+i}, v{r+2*i}, v{r+2*i+1}")
                a(f"buffer_store_dwordx4 {vr(o,4)}, v{EPI}, {WS}, s63 offen offset:{512*c} {SC}")
    p1_end()
    a("L_cu:")
    a("s_mul_i32 s66, s57, 12288\ns_add_u32 s66, s66, 16384")
    adr_kc(a, ADR + 4, "s66")
    a(f"v_mul_u32_u24 v{EPI}, 18432, v3\nv_lshl_add_u32 v{EPI}, v2, 4, v{EPI}")
    def reads_u(s, buf):
        return [rd128(frag(buf, 0), ADR + s, 0), rd128(frag(buf, 2), ADR + 4 + s, 0), rd128(frag(buf, 1), ADR + s, 4096),
                rd128(frag(buf, 3), ADR + 4 + s, 4096), rd128(frag(buf, 4), ADR + 4 + s, 8192)]
    p1_start()
    compute_loop(a, ADR, 8, reads_u, lambda buf: [mf(acc(mt, c), frag(buf, mt), frag(buf, 2 + c)) for c in range(3) for mt in range(2)])
    stamp(a, 3)
    a(f"""s_mul_i32 s68, s67, 73728
    s_mul_i32 s63, s57, 36864
    s_add_u32 s68, s68, s63
    s_sub_u32 s63, s59, 9
    s_mul_i32 s63, s63, 1536
    s_add_u32 s68, s68, s63
    s_add_u32 s68, s68, {UF_OFF}""")
    t = 0
    for mt in range(2):
        for jj in range(2):
            a(f"s_add_u32 s63, s68, {73728*mt + 9216*jj}")
            for c in range(3):
                r = acc(mt, c) + 8 * jj
                o = FR0 + 4 * (t % 8); t += 1
                for i in range(4): a(f"v_cvt_pk_bf16_f32 v{o+i}, v{r+2*i}, v{r+2*i+1}")
                a(f"buffer_store_dwordx4 {vr(o,4)}, v{EPI}, {WS}, s63 offen offset:{512*c} {SC}")
    a("L_c_p1d:")
    stamp(a, 4)
    a(f"""s_waitcnt vmcnt(0)
    s_cmp_lg_u32 s3, 0
    s_cbranch_scc1 L_c_nn2
    s_mov_b64 exec, 1
    v_cmp_eq_u32 vcc, 0, v20
    v_mov_b32 v21, {NONCE_LDS}
    s_nop 0
    v_cndmask_b32 v20, v20, v22, vcc
    ds_write_b32 v21, v20
    v_readfirstlane_b32 s94, v20
    s_mov_b64 exec, -1
    s_waitcnt lgkmcnt(0)
    L_c_nn2:""")
    stamp(a, 5)
    a("s_barrier")
    gen_attn(a)
    gen_p3_comp(a)
    a("L_exit:\ns_endpgm")

def head_geom(a):
    a("""s_lshl_b32 s40, s34, 2
    s_lshr_b32 s41, s35, 3
    s_add_u32 s40, s40, s41
    s_and_b32 s95, s35, 7
    s_mul_i32 s42, s40, 9
    s_lshr_b32 s42, s42, 2
    s_and_b32 s45, s40, 3
    s_lshr_b32 s46, s45, 1
    s_add_u32 s43, s42, s46
    s_xor_b32 s44, s46, 1
    s_lshl_b32 s44, s44, 1
    s_add_u32 s44, s44, s42
    s_lshl_b32 s44, s44, 15
    s_lshl_b32 s46, s46, 3
    s_add_u32 s44, s44, s46""")

def p3_geom(a):
    a("""s_and_b32 s58, s34, 3
    s_lshl_b32 s58, s58, 3
    s_and_b32 s59, s35, 7
    s_add_u32 s58, s58, s59
    s_lshr_b32 s59, s34, 2
    s_mul_i32 s59, s59, 3
    s_lshr_b32 s60, s35, 3
    s_add_u32 s59, s59, s60""")

def gen_attn(a):
    head_geom(a)
    p3_geom(a)
    a(f"""s_lshl_b32 s66, s57, 13
    v_lshl_add_u32 v30, v3, 3, v4
    v_lshlrev_b32 v29, 7, v30
    v_add_u32 v29, v29, v5
    v_xor_b32 v31, s56, v6
    v_lshl_add_u32 v29, v31, 6, v29
    v_add_u32 v{ADR3+4}, s66, v29
    v_mul_u32_u24 v29, 192, v30
    v_add_u32 v29, v29, v5
    s_mul_i32 s63, s57, 12288
    s_add_u32 s62, s63, {SLOT}
    v_add_u32 v{ADR3+6}, s62, v29
    v_lshlrev_b32 v29, 10, v3
    v_lshl_add_u32 v29, v2, 4, v29
    s_lshl_b32 s62, s56, 9
    s_add_u32 s62, s62, s66
    s_add_u32 s62, s62, {SLOT}
    v_add_u32 v{ADR3+5}, s62, v29
    s_add_u32 s66, s63, 16384""")
    adr_kc(a, ADR3, "s66")
    for i in range(48): a(f"v_mov_b32 v{ACC3+i}, 0")
    a(f"""s_lshl_b32 s46, s95, 3
    s_lshl_b32 s47, s3, 1
    s_add_u32 s46, s46, s47
    s_lshl_b32 s47, s46, 9
    s_lshl_b32 s48, s43, 15
    s_add_u32 s48, s48, s47
    s_add_u32 s49, s44, s47
    v_lshlrev_b32 v{VAK}, 4, v1
    v_lshlrev_b32 v13, 15, v3
    v_lshl_add_u32 v13, v2, 4, v13
    v_lshlrev_b32 v14, 30, v3
    v_lshl_add_u32 v14, v2, 4, v14
    v_lshlrev_b32 v{VAL}, 3, v2
    v_add_u32 v{VAL}, 8192, v{VAL}
    v_mov_b32 v8, 0x8000
    v_cmp_gt_u32 vcc, 19, v2
    v_mul_u32_u24 v9, 304, v3
    s_nop 0
    v_cndmask_b32 v8, v8, v2, vcc
    v_cmp_eq_u32 vcc, 28, v2
    s_nop 1
    v_cndmask_b32 v8, v8, 18, vcc
    v_lshl_add_u32 v15, v8, 4, v9
    v_add_u32 v{VAV}, 10240, v15""")
    for i in range(32): a(f"v_mov_b32 v{OA+i}, 0")
    for i in range(4): a(f"v_mov_b32 v{P0+12+i}, 0")
    for i in range(4): a(f"v_mov_b32 v{VB+8+4+i}, 0")
    a(f"""s_lshl_b32 s50, s40, 16
    s_add_u32 s50, s50, s47
    s_add_u32 s50, s50, {OF_OFF}
    s_lshr_b32 s51, s40, 2
    s_lshl_b32 s51, s51, 15
    s_add_u32 s51, s51, s47
    s_lshl_b32 s62, s45, 2
    s_add_u32 s51, s51, s62
    s_add_u32 s51, s51, {OF_OFF + 64*GS}
    s_cmp_eq_u32 s45, 3
    s_cselect_b32 s60, 0, -1
    s_cmp_eq_u32 s45, 0
    s_cselect_b32 s61, 0, -1
    s_cmp_eq_u32 s45, 1
    s_cselect_b32 s62, 0, -1
    s_mov_b32 s63, -1
    s_cmp_eq_u32 s45, 2
    s_mov_b32 s64, -1
    s_cselect_b32 s65, 0, -1
    s_setprio 2""")
    stamp(a, 6)
    a("s_barrier")
    a(f"""buffer_load_dwordx4 {vr(QM,4)}, v13, {WS}, s48 offen {SC}
    buffer_load_dwordx4 {vr(QM+4,4)}, v13, {WS}, s48 offen offset:512 {SC}
    buffer_load_dwordx2 {vr(QL,2)}, v{VAK}, {WS}, s49 offen {SC}
    s_waitcnt vmcnt(0)
    v_and_b32 v{QL}, s60, v{QL}
    v_and_b32 v{QL+1}, s61, v{QL+1}
    v_cndmask_b32 v{QM}, 0, v{QM}, s[62:63]
    v_cndmask_b32 v{QM+4}, 0, v{QM+4}, s[62:63]
    v_cndmask_b32 v{QM+3}, 0, v{QM+3}, s[64:65]
    v_cndmask_b32 v{QM+7}, 0, v{QM+7}, s[64:65]
    s_mov_b32 s60, 0
    s_barrier""")
    stamp(a, 7)
    def toff(t, per): return (t // 8) * UNIT + (t % 8) * per
    def rdK(t, buf): return f"ds_read_b128 {vr(KM+4*buf,4)}, v{VAK} offset:{toff(t,1024)}"
    def rdL(t, buf): return f"ds_read_b64 {vr(KL+2*buf,2)}, v{VAL} offset:{toff(t,256)}"
    def rdV(t, m, buf): return f"ds_read_b128 {vr(VB+8*buf+4*m,4)}, v{VAV} offset:{toff(t,1216)+608*m}"
    def qk_a(buf): return mf(S0+32*buf, KM+4*buf, QM, "0")
    def qk_b(buf): return mf(S0+32*buf+16, KM+4*buf, QM+4, "0")
    def qk_l(buf): return f"v_mfma_f32_32x32x4_2b_bf16 {vr(S0+32*buf,32)}, {vr(KL+2*buf,2)}, {vr(QL,2)}, {vr(S0+32*buf,32)}"
    def pv(q, m, buf): return mf(OA+16*q, VB+8*buf+4*m, P0+8*q+4*m)
    def H(k, buf):
        b = S0 + 32*buf + 4*k
        for i in range(4): a(f"v_exp_f32 v{b+i}, v{b+i}")
        a(f"v_cvt_pk_bf16_f32 v{P0+2*k}, v{b}, v{b+1}\nv_cvt_pk_bf16_f32 v{P0+2*k+1}, v{b+2}, v{b+3}")
    a(rdK(0, 0)); a(rdL(0, 0)); a(rdK(1, 1)); a(rdL(1, 1)); a(rdV(0, 0, 0)); a(rdV(0, 1, 0))
    a("s_waitcnt lgkmcnt(4)")
    a(qk_a(0)); a(qk_b(0)); a("s_nop 9"); a(qk_l(0)); a("s_nop 15\ns_nop 3")
    a(".p2align 6\nL_at_loop:")
    barmask = (1 << (GROUPS[0]-1)) | (1 << (GROUPS[0]+GROUPS[1]-1)) | (1 << 6)
    for j in range(8):
        b = j & 1; nb = b ^ 1
        H(0, b); a(pv(1, 1, nb)); a("s_waitcnt lgkmcnt(0)")
        H(1, b); a(qk_a(nb)); a(rdV(j+1, 0, nb))
        H(2, b); a(qk_b(nb)); a(rdV(j+1, 1, nb))
        H(3, b); a(pv(0, 0, b)); a(rdK(j+2, b))
        H(4, b); a(qk_l(nb))
        H(5, b)
        H(6, b); a(pv(0, 1, b)); a(rdL(j+2, b))
        H(7, b); a(pv(1, 0, b))
        if j == 4: a(f"s_bitcmp1_b32 {barmask}, s60")
        if j == 5: a("s_cbranch_scc0 L_at_nobar\ns_barrier\nL_at_nobar:")
        if j == 6: a("s_add_u32 s60, s60, 1")
        if j == 7:
            a("s_cmp_lt_u32 s60, 8")
            for r in (VAK, VAL, VAV): a(f"v_add_u32 v{r}, {UNIT}, v{r}")
            a("s_cbranch_scc1 L_at_loop")
    a(pv(1, 1, 1))
    a("s_mov_b32 s61, 0")
    stamp(a, 8)
    a("L_at_fin:")
    a("s_nop 15\ns_nop 3\nv_cmp_eq_u32 vcc, 0, v3\ns_nop 1")
    for q in range(2):
        a(f"v_cndmask_b32 v{16+q}, v{OA+16*q+12}, v{OA+16*q+10}, vcc")
    a("s_cmp_lg_u32 s61, 0\ns_cbranch_scc1 L_at_store")
    a("v_min_f32 v18, v16, v17\nv_add_f32 v20, v16, v17\nv_mov_b32 v19, v20")
    for q in range(2):
        o = OA + 16*q
        for i in range(10):
            a(f"v_add_f32 v19, abs(v{o+i}), v19")
    a(f"""v_cmp_le_f32 vcc, {hex(f2u(2.0**-60))}, v18
    s_mov_b64 s[62:63], vcc
    v_cmp_ge_f32 vcc, {hex(f2u(2.0**60))}, v20
    s_and_b64 s[62:63], s[62:63], vcc
    v_cmp_ge_f32 vcc, {hex(f2u(2.0**120))}, v19
    s_and_b64 s[62:63], s[62:63], vcc
    s_cmp_eq_u64 s[62:63], exec
    s_cbranch_scc0 L_at_slow""")
    a("L_at_store:")
    for q in range(2):
        o = OA + 16*q
        a(f"v_rcp_f32 v{16+q}, v{16+q}\ns_nop 0")
        for i in range(10): a(f"v_mul_f32 v{o+i}, v{o+i}, v{16+q}")
        for i in range(5): a(f"v_cvt_pk_bf16_f32 v{P0+8*q+i}, v{o+2*i}, v{o+2*i+1}")
        a(f"buffer_store_dwordx4 {vr(P0+8*q,4)}, v13, {WS}, s50 offen offset:{512*q} {SC}")
        a(f"buffer_store_dword v{P0+8*q+4}, v14, {WS}, s51 offen offset:{512*q} {SC}")
    a("s_setprio 0\ns_branch L_c_p3")
    a("L_at_slow:")
    a(f"""v_lshlrev_b32 v21, 4, v2
    v_mul_u32_u24 v22, {VG}, v3
    v_add_u32 v22, v22, v21
    v_cmp_gt_u32 vcc, 18, v2
    v_mov_b32 v23, {OOB}
    v_mov_b32 v24, 0x3f803f80
    v_cndmask_b32 v22, v23, v22, vcc
    v_cndmask_b32 v24, v24, 0, vcc""")
    def reset():
        a(f"""s_lshl_b32 s62, s43, 15
        s_add_u32 s62, s62, {KF_OFF}
        s_add_u32 s63, s44, {KF_OFF}
        s_mul_i32 s64, s40, 288
        s_add_u32 s64, s64, {VF_OFF}
        s_mov_b32 s60, 0""")
    def qk_plain():
        a(f"""buffer_load_dwordx4 {vr(KM,4)}, v13, {WS}, s62 offen {SC}
        buffer_load_dwordx2 {vr(KL,2)}, v21, {WS}, s63 offen {SC}
        s_waitcnt vmcnt(0)""")
        a(qk_a(0)); a(qk_b(0)); a("s_nop 9"); a(qk_l(0)); a("s_nop 15\ns_nop 3")
    def adv(lab):
        a(f"""s_add_u32 s62, s62, 512
        s_add_u32 s63, s63, 512
        s_add_u32 s64, s64, {4*VG}
        s_add_u32 s60, s60, 1
        s_cmp_lt_u32 s60, 64
        s_cbranch_scc1 {lab}""")
    reset()
    a("v_mov_b32 v18, 0xff800000\nv_mov_b32 v19, 0xff800000\nL_at_slowa:")
    qk_plain()
    for q in range(2):
        for i in range(0, 16, 2):
            a(f"v_max3_f32 v{18+q}, v{S0+16*q+i}, v{S0+16*q+i+1}, v{18+q}")
    adv("L_at_slowa")
    a("""v_xor_b32 v20, 32, v1
    v_lshlrev_b32 v20, 2, v20
    ds_bpermute_b32 v16, v20, v18
    ds_bpermute_b32 v17, v20, v19
    s_waitcnt lgkmcnt(0)
    v_max_f32 v18, v18, v16
    v_max_f32 v19, v19, v17""")
    reset()
    for i in range(32): a(f"v_mov_b32 v{OA+i}, 0")
    a("L_at_slowb:")
    a(f"""buffer_load_dwordx4 {vr(VB,4)}, v22, {WS}, s64 offen {SC}
    s_add_u32 s65, s64, {2*VG}
    buffer_load_dwordx4 {vr(VB+4,4)}, v22, {WS}, s65 offen {SC}""")
    qk_plain()
    for i in range(8): a(f"v_or_b32 v{VB+i}, v{VB+i}, v24")
    for q in range(2):
        for i in range(16): a(f"v_sub_f32 v{S0+16*q+i}, v{S0+16*q+i}, v{18+q}")
    for k in range(8): H(k, 0)
    a("s_nop 1")
    for q in range(2):
        for m in range(2): a(pv(q, m, 0))
    a("s_nop 7")
    adv("L_at_slowb")
    a("s_mov_b32 s61, 1\ns_branch L_at_fin")

def gen_p3_comp(a):
    a("L_c_p3:")
    a("s_cmp_ge_u32 s35, 24\ns_cbranch_scc0 L_c_p3go\ns_waitcnt vmcnt(0)\ns_barrier")
    endk(a)
    a("L_c_p3go:")
    srd(a, 40, 28, 2048*4608)
    srd(a, 44, 10, 2048*1152)
    srd(a, 48, 26, 1152)
    XD = 96
    a(f"""s_lshl_b32 s66, s58, 6
    s_lshl_b32 s67, s56, 5
    s_add_u32 s69, s66, s67
    s_lshr_b32 s66, s58, 2
    s_lshl_b32 s66, s66, 8
    s_lshl_b32 s67, s56, 7
    s_add_u32 s66, s66, s67
    s_lshl_b32 s67, s57, 6
    s_add_u32 s66, s66, s67
    s_and_b32 s67, s58, 3
    s_lshl_b32 s67, s67, 2
    s_add_u32 s66, s66, s67
    v_mul_u32_u24 v28, {2*1152}, v3
    v_lshl_add_u32 v28, v2, 1, v28
    s_mul_i32 s67, s66, 1152
    s_mul_i32 s68, s59, 192
    s_add_u32 s67, s67, s68
    v_lshlrev_b32 v29, 1, v2""")
    for c in range(3):
        a(f"buffer_load_ushort v{XD+24+c}, v29, s[48:51], s68 offen offset:{64*c}")
    for r in range(8):
        a(f"s_add_u32 s63, s67, {(32*(r>>2) + ((r&3)>>1) + 16*(r&1))*1152}")
        for c in range(3):
            a(f"buffer_load_ushort v{XD+8*c+r}, v28, s[44:47], s63 offen offset:{64*c}")
    a(f"""s_lshr_b32 s47, s58, 2
    s_mul_i32 s47, s47, 6
    s_add_u32 s47, s47, s59
    s_lshl_b32 s47, s47, 7
    s_add_u32 s47, s47, {MB_O}
    s_cmp_eq_u32 s3, 0
    s_cselect_b32 s46, 5, 99
    s_barrier""")
    stamp(a, 9)
    def hook():
        a("s_waitcnt vmcnt(27)\ns_cmp_eq_u32 s60, s46\ns_cbranch_scc0 L_c_nopoll")
        poll(a, "s47", 32, cnt="s45")
        a("L_c_nopoll:")
    def reads_c(s, buf):
        return [rdtr(frag(buf, 0), ADR3 + 4, (16*s)*128), rdtr(frag(buf, 0) + 2, ADR3 + 4, (16*s+4)*128)] + \
               [rd128(frag(buf, 2 + c), ADR3 + s, 4096*c) for c in range(3)]
    compute_loop(a, ADR3, 5, reads_c, lambda buf: [mf(ACC3 + 16*c, frag(buf, 0), frag(buf, 2 + c)) for c in range(3)], hook=hook)
    a(f"""s_mul_i32 s63, s3, 6144
    v_lshlrev_b32 v28, 4, v1
    v_add_u32 v29, s63, v28
    s_xor_b32 s63, s3, 2
    s_mul_i32 s63, s63, 6144
    v_add_u32 v28, s63, v28
    v_mul_u32_u24 v{EPI}, {2*4608}, v3
    v_lshl_add_u32 v{EPI}, v2, 2, v{EPI}
    s_mul_i32 s67, s66, 4608
    s_mul_i32 s68, s59, 384
    s_add_u32 s67, s67, s68
    s_add_u32 s67, s67, 2304
    s_waitcnt vmcnt(0)
    s_barrier""")
    for c in range(3): a(f"v_lshlrev_b32 v{XD+24+c}, 16, v{XD+24+c}")
    for i in range(24): a(f"v_lshlrev_b32 v{XD+i}, 16, v{XD+i}")
    def exchange(accb, rowoff, xd, tag, tail):
        a(f"s_cmp_eq_u32 s57, 0\ns_cbranch_scc0 L_x1_{tag}")
        for ri in range(2):
            if ri == 1: a(f"L_x1_{tag}:")
            keep = 8 * ri; give = 8 * (1 - ri)
            for c in range(3):
                for q in range(2):
                    a(f"ds_write_b128 v29, {vr(accb+16*c+give+4*q,4)} offset:{(2*c+q)*1024}")
            if xd:
                for c in range(3):
                    for r in range(8):
                        a(f"v_fma_f32 v{accb+16*c+keep+r}, v{XD+8*c+r}, v{XD+24+c}, v{accb+16*c+keep+r}")
            a("s_waitcnt lgkmcnt(0)\ns_barrier")
            for c in range(3):
                for q in range(2):
                    a(f"ds_read_b128 {vr(FR0+8*c+4*q,4)}, v28 offset:{(2*c+q)*1024}")
            a("s_waitcnt lgkmcnt(0)")
            for r in range(8):
                a(f"s_add_u32 s63, s67, {rowoff(r)*4608}")
                for c in range(3):
                    a(f"v_add_f32 v{accb+16*c+keep+r}, v{accb+16*c+keep+r}, v{FR0+8*c+r}")
                    a(f"buffer_store_dword v{accb+16*c+keep+r}, v{EPI}, s[40:43], s63 offen offset:{128*c}")
            tail(ri)
    exchange(ACC3, lambda r: 32*(r>>2) + ((r&3)>>1) + 16*(r&1), True, "c", lambda ri: a("s_branch L_c_o") if ri == 0 else None)
    a("L_c_o:")
    for i in range(48): a(f"v_mov_b32 v{ACC+i}, 0")
    a(f"""v_mul_u32_u24 v{EPI}, {4*4608}, v3
    v_lshl_add_u32 v{EPI}, v2, 2, v{EPI}
    s_lshl_b32 s67, s57, 4
    s_add_u32 s67, s67, s69
    s_mul_i32 s67, s67, 4608
    s_add_u32 s67, s67, s68
    s_barrier""")
    stamp(a, 10)
    def reads_o(s, buf):
        return [rd128(frag(buf, 0), ADR3 + 5, 2048*s)] + \
               [rdtr(frag(buf, 2 + c) + 2*e, ADR3 + 6, 16384 + (16*s + 4*e)*192 + 64*c) for c in range(3) for e in range(2)]
    compute_loop(a, ADR3 + 5, 2, reads_o, lambda buf: [mf(ACC + 16*c, frag(buf, 0), frag(buf, 2 + c)) for c in range(3)], nchunks=5, nslots=3)
    exchange(ACC, lambda r: 8*(r>>2) + (r&3), False, "o", lambda ri: endk(a))

def gen_prefetch(a):
    a("""s_lshl_b32 s60, s35, 2
    s_add_u32 s60, s60, s69
    s_lshl_b32 s60, s60, 13""")
    srd(a, 44, 8, 576*1152)
    a("buffer_load_dword v5, v187, s[44:47], s60 offen")
    a(f"s_lshr_b32 s61, s34, 2\ns_mul_i32 s61, s61, {288*1152}\ns_add_u32 s62, s61, {288*1152}\ns_add_u32 s61, s61, s60")
    srd(a, 48, 20, "s62")
    a("buffer_load_dword v6, v187, s[48:51], s61 offen")
    srd(a, 44, 22, "s62")
    a("buffer_load_dword v7, v187, s[44:47], s61 offen")
    a(f"s_and_b32 s61, s34, 3\ns_mul_i32 s61, s61, {512*1152}\ns_add_u32 s62, s61, {512*1152}\ns_add_u32 s61, s61, s60")
    srd(a, 48, 10, "s62")
    a("buffer_load_dword v8, v187, s[48:51], s61 offen")

UR = 64; XR = 96; XI = 128
def gen_scan_load(a):
    a("""s_lshl_b32 s61, s69, 5
    s_add_u32 s61, s61, s35
    s_mov_b32 s60, 576
    s_cmp_ge_u32 s61, 72
    s_cbranch_scc1 L_h_scanl
    s_mul_i32 s60, s34, 72
    s_add_u32 s60, s60, s61
    s_mul_i32 s61, s60, 683
    s_lshr_b32 s61, s61, 16
    s_lshl_b32 s61, s61, 3
    s_add_u32 s61, s61, s34
    s_lshl_b32 s61, s61, 7""")
    a(f"s_add_u32 s61, s61, {MB_U}")
    srd(a, 40, 12, 1152); srd(a, 44, 14, 1152); srd(a, 48, 24, 1152)
    a(f"""s_lshl_b32 s62, s60, 1
    v_mov_b32 v4, s62
    buffer_load_ushort v5, v4, s[40:43], 0 offen
    buffer_load_ushort v6, v4, s[44:47], 0 offen
    buffer_load_ushort v7, v4, s[48:51], 0 offen""")
    poll(a, "s61", 16)
    a(f"""s_mov_b32 s61, 73728
    v_mul_lo_u32 v8, v1, s61
    s_lshl_b32 s61, s60, 4
    s_add_u32 s61, s61, {UF_OFF}""")
    for q in range(8):
        a(f"s_add_u32 s62, s61, {9216*q}\nbuffer_load_dwordx4 {vr(UR+4*q,4)}, v8, {WS}, s62 offen {SC}")

def gen_scan(a):
    a(f"""v_lshlrev_b32 v5, 16, v5
    v_lshlrev_b32 v6, 16, v6
    v_lshlrev_b32 v7, 16, v7
    v_mul_f32 v7, {hex(f2u(LOG2E))}, v7
    v_exp_f32 v7, v7
    s_nop 0
    v_cvt_pk_bf16_f32 v7, v7, v7
    v_and_b32 v7, 0xffff0000, v7
    v_mul_f32 v9, v7, v5
    v_mul_f32 v10, v7, v6
    v_mul_f32 v9, {hex(f2u(LOG2E))}, v9
    v_exp_f32 v9, v9
    v_mul_f32 v10, 0.15915494309189535, v10
    v_fract_f32 v10, v10
    v_cos_f32 v11, v10
    v_sin_f32 v12, v10
    s_nop 0
    v_mul_f32 v14, v9, v11
    v_mul_f32 v16, v9, v12
    v_add_f32 v11, -1.0, v14
    v_mul_f32 v9, v5, v5
    v_fma_f32 v9, v6, v6, v9
    v_rcp_f32 v9, v9
    v_mul_f32 v18, v11, v5
    v_fma_f32 v18, v16, v6, v18
    v_mul_f32 v20, v16, v5
    v_fma_f32 v20, -v11, v6, v20
    v_add_f32 v9, v9, v9
    v_mul_f32 v18, v18, v9
    v_mul_f32 v20, v20, v9
    v_sub_f32 v16, 0, v16
    v_mov_b32 v15, v14
    v_mov_b32 v17, v16
    v_mov_b32 v19, v18
    v_mov_b32 v21, v20""")
    def csq(dr, di, sr_, si):
        a(f"""v_mul_f32 v9, v{si}, v{si}
        v_mul_f32 v{di}, v{sr_}, v{si}
        v_fma_f32 v{dr}, v{sr_}, v{sr_}, -v9
        v_add_f32 v{di}, v{di}, v{di}""")
    csq(22, 23, 14, 16)
    for _ in range(3): csq(22, 23, 22, 23)
    a("s_waitcnt vmcnt(0)")
    stamp(a, 10)
    def pk(d, x, y, z=None, neg=""):
        if z is None: a(f"v_pk_mul_f32 {vr(d,2)}, {vr(x,2)}, {vr(y,2)} {neg}")
        else: a(f"v_pk_fma_f32 {vr(d,2)}, {vr(x,2)}, {vr(y,2)}, {vr(z,2)} {neg}")
    NEG0 = "neg_lo:[1,0,0] neg_hi:[1,0,0]"
    for D in range(16):
        a(f"""v_lshlrev_b32 v24, 16, v{UR+D}
        v_and_b32 v25, 0xffff0000, v{UR+D}
        v_lshlrev_b32 v26, 16, v{UR+16+D}
        v_and_b32 v27, 0xffff0000, v{UR+16+D}""")
        pk(XR+2*D, 18, 24)
        pk(XI+2*D, 18, 26, None, "neg_lo:[1,0] neg_hi:[1,0]")
        pk(XR+2*D, 20, 26, XR+2*D, NEG0)
        pk(XI+2*D, 20, 24, XI+2*D, NEG0)
    def step(er, ei, nr, ni, D):
        pk(nr, 14, er, XR+2*D)
        pk(ni, 14, ei, XI+2*D)
        pk(nr, 16, ei, nr, NEG0)
        pk(ni, 16, er, ni)
    cur = (XR, XI)
    for D in range(1, 16):
        nx = (24, 26) if D & 1 else (28, 30)
        step(cur[0], cur[1], nx[0], nx[1], D); cur = nx
    def cmac(dr, di, pr, pi, xr, xi, ar, ai):
        a(f"""v_fma_f32 v{dr}, v{pr}, v{xr}, v{ar}
        v_fma_f32 v{di}, v{pr}, v{xi}, v{ai}
        v_fma_f32 v{dr}, -v{pi}, v{xi}, v{dr}
        v_fma_f32 v{di}, v{pi}, v{xr}, v{di}""")
    cmac(28, 29, 22, 23, 24, 26, 25, 27)
    csq(10, 11, 22, 23)
    for k in range(6):
        a(f"""v_subrev_u32 v12, {1<<k}, v1
        v_lshlrev_b32 v12, 2, v12
        v_cmp_le_u32 vcc, {1<<k}, v1
        ds_bpermute_b32 v30, v12, v28
        ds_bpermute_b32 v31, v12, v29
        s_waitcnt lgkmcnt(0)
        v_cndmask_b32 v30, 0, v30, vcc
        v_cndmask_b32 v31, 0, v31, vcc""")
        cmac(28, 29, 10, 11, 30, 31, 28, 29)
        if k < 5: csq(10, 11, 10, 11)
    a("""v_subrev_u32 v12, 1, v1
    v_lshlrev_b32 v12, 2, v12
    v_cmp_le_u32 vcc, 1, v1
    ds_bpermute_b32 v30, v12, v28
    ds_bpermute_b32 v31, v12, v29
    s_waitcnt lgkmcnt(0)
    v_cndmask_b32 v28, 0, v30, vcc
    v_cndmask_b32 v30, 0, v31, vcc""")
    cmac(29, 31, 22, 23, 28, 30, 24, 26)
    cur = (28, 30)
    for D in range(16):
        step(cur[0], cur[1], XR+2*D, XI+2*D, D); cur = (XR+2*D, XI+2*D)
        a(f"v_cvt_pk_bf16_f32 v{UR+D}, v{XR+2*D}, v{XR+2*D+1}\nv_cvt_pk_bf16_f32 v{UR+16+D}, v{XI+2*D}, v{XI+2*D+1}")
    a(f"""v_lshlrev_b32 v8, 4, v1
    s_lshl_b32 s61, s60, 12
    s_add_u32 s61, s61, {HT_OFF}
    s_add_u32 s62, s61, {576*4096}""")
    for q in range(4): a(f"buffer_store_dwordx4 {vr(UR+4*q,4)}, v8, {WS}, s61 offen offset:{1024*q} {SC}")
    for q in range(4): a(f"buffer_store_dwordx4 {vr(UR+16+4*q,4)}, v8, {WS}, s62 offen offset:{1024*q} {SC}")
    a(f"""s_mul_i32 s61, s34, {384 - 288}
    s_lshl_b32 s62, s60, 2
    s_add_u32 s61, s61, s62
    s_add_u32 s61, s61, {MB_S}
    s_waitcnt vmcnt(0)""")
    post_strided(a, 1, "s61")
```

```python
import sys
from asm import *
import asm, fused
NAME = "concat_heads__softmax_full_mha__ssm_conv_s5__prompt"
def build():
    ref = open(f"cdna_kernels/{NAME}.s.ref").read().split("\n")
    head = [l for l in ref if l.startswith(";") and "@launch" not in l]
    head += ["; @launch grid=(256,1,1) block=(512,1,1) lds=163840"]
    a = A()
    a('.amdgcn_target "amdgcn-amd-amdhsa--gfx950"\n.text')
    fused.gen(a)
    return "\n".join(head) + "\n" + a.text() + '.section .rodata,"a"\n' + kdesc(fused.NAME, 240)
if __name__ == "__main__":
    if "--stamp" in sys.argv: asm.STAMP = True
    if "--dbg" in sys.argv: asm.STAMP = True; asm.DBGSTAMP = True
    out = sys.argv[1] if len(sys.argv) > 1 else f"cdna_kernels/{NAME}.s"
    open(out, "w").write(build())
    print("wrote", out)
```

```python
import struct
class A:
    def __init__(self):
        self.l = []
        self.uid = 0
    def __call__(self, s):
        for x in s.strip("\n").split("\n"):
            x = x.strip()
            if not x: continue
            if x.endswith(":") or x.startswith("."):
                self.l.append(x)
            else:
                self.l.append("    " + x)
    def lab(self, p="L"):
        self.uid += 1
        return f"{p}_{self.uid}"
    def text(self):
        return "\n".join(self.l) + "\n"

def f2u(x): return struct.unpack("<I", struct.pack("<f", x))[0]
def vr(a, n):
    return f"v[{a}:{a+n-1}]" if n > 1 else f"v{a}"
def sr(a, n):
    return f"s[{a}:{a+n-1}]" if n > 1 else f"s{a}"
def srd(a, d, base, nbytes):
    a(f"""s_mov_b32 s{d}, s{base}
    s_mov_b32 s{d+1}, s{base+1}
    s_mov_b32 s{d+2}, {nbytes}
    s_mov_b32 s{d+3}, 0x00020000""")
def kdesc(name, vgpr, sgpr=102):
    acc = (vgpr + 3) // 4 * 4
    return f""".p2align 6
.amdhsa_kernel {name}
  .amdhsa_next_free_vgpr {vgpr}
  .amdhsa_next_free_sgpr {sgpr}
  .amdhsa_accum_offset {acc}
  .amdhsa_group_segment_fixed_size 0
  .amdhsa_kernarg_size 120
  .amdhsa_user_sgpr_count 2
  .amdhsa_user_sgpr_kernarg_segment_ptr 1
  .amdhsa_system_sgpr_workgroup_id_x 1
.end_amdhsa_kernel
"""
def khead(a, name):
    a(f""".globl {name}
.p2align 8
.type {name},@function
{name}:""")

STAMP = False
STAMP_OFF = 32 << 20
NST = 12
def stamp_init(a):
    if not STAMP: return
    for i in range(2*NST): a(f"s_mov_b32 s{70+i}, 0")
def stamp(a, idx):
    if not STAMP: return
    a(f"""s_memrealtime s[98:99]
    s_memtime s[100:101]
    s_waitcnt lgkmcnt(0)
    s_mov_b32 s{70+2*idx}, s98
    s_mov_b32 s{71+2*idx}, s100""")
def stamp_flush(a, wsreg):
    if not STAMP: return
    a(f"""s_mov_b32 s96, s{wsreg}
    s_mov_b32 s97, s{wsreg+1}
    s_mov_b32 s98, 0x4000000
    s_mov_b32 s99, 0x00020000
    s_lshl_b32 s69, s2, 3
    s_add_u32 s69, s69, s3
    s_lshl_b32 s69, s69, 7
    s_add_u32 s69, s69, {STAMP_OFF}
    v_mov_b32 v0, 0
    s_mov_b64 exec, 1""")
    for i in range(2*NST):
        a(f"v_mov_b32 v1, s{70+i}\nbuffer_store_dword v1, v0, s[96:99], s69 offen offset:{4*i}")

DBGSTAMP = False
def stamp_dbg(a):
    if not DBGSTAMP: return
    l = a.lab("L_nodbg")
    a(f"s_cmp_lg_u32 s3, 0\ns_cbranch_scc1 {l}\nv_mov_b32 v0, 0\ns_mov_b64 exec, 1")
    for i in range(NST):
        a(f"s_sub_u32 s69, s{70+2*i}, s94\ns_cmp_eq_u32 s{70+2*i}, 0\ns_cselect_b32 s69, 0, s69\ns_max_i32 s69, s69, 0\nv_mov_b32 v1, s69\nbuffer_atomic_umax v1, v0, s[52:55], 0 offen offset:{8+4*i} sc1")
    a(f"{l}:")
```

```python
from asm import *
import asm

GS = 32768
QF_OFF = 0
KF_OFF = 72 * GS
VF_OFF = 144 * GS
VG = 9216
OF_OFF = VF_OFF + 256 * VG
UF_OFF = OF_OFF + 72 * GS
HT_OFF = UF_OFF + 64 * 73728
MB_QKV = HT_OFF + 2 * 576 * 4096
MB_U = MB_QKV + 32 * 384
MB_H = MB_U + 48 * 128
MB_O = MB_H + 64 * 128
MB_S = MB_O + 192 * 128
WS_USED = MB_S + 8 * 384
NONCE_LDS = 163840 - 16
HTOUCH = True
BARSTAMP = False
P3STAMP = False
POSTAT = 1
ROT = 1
TOUCH1 = 0
TOUCHW = 1
SEQ1 = [0,1,2,3,0,1,2,3,0]
SEQC = [0,1,2,3,0,1,2,3,0]
SEQO = [[5,10,0,15,5],[5,10,0,15,5]]
OUTSC = ''
CODEWARM = True
OOB = 0x40000000
SLOT = 40960
UNIT = 20480
QSCALE = (18 ** -0.5) * 1.4426950408889634
LOG2E = 1.4426950408889634
SC = "sc1"
NAME = "concat_heads__softmax_full_mha__ssm_conv_s5__prompt_kernel"
WS = "s[36:39]"; DBG = "s[52:55]"

def mf(d, x, y, c=None):
    return f"v_mfma_f32_32x32x16_bf16 {vr(d,16)}, {vr(x,4)}, {vr(y,4)}, {vr(d,16) if c is None else c}"
def rd128(dst, adr, off): return f"ds_read_b128 {vr(dst,4)}, v{adr} offset:{off}"
def rdtr(dst, adr, off): return f"ds_read_b64_tr_b16 {vr(dst,2)}, v{adr} offset:{off}"

def endk(a, idx=11):
    if asm.STAMP: a("s_waitcnt vmcnt(0)")
    stamp(a, idx)
    asm.stamp_dbg(a)
    if not asm.DBGSTAMP: stamp_flush(a, 32)
    a("s_endpgm")

def poll(a, soff, nlanes, wide=False, tmp="s[66:67]", cnt="s68"):
    lp = a.lab("L_poll"); dn = a.lab("L_polld")
    a(f"""v_lshlrev_b32 v26, {3 if wide else 2}, v1
    s_mov_b32 {cnt}, 0x40000
    s_mov_b32 exec_lo, {hex(((1 << nlanes) - 1) & 0xffffffff)}
    s_mov_b32 exec_hi, {hex(((1 << nlanes) - 1) >> 32)}
    {lp}:
    buffer_load_dword{"x2 v[24:25]" if wide else " v24"}, v26, {WS}, {soff} offen sc1
    s_waitcnt vmcnt(0)
    v_cmp_eq_u32 vcc, s94, v24""")
    if wide: a(f"v_cmp_eq_u32 {tmp}, s94, v25\ns_and_b64 vcc, vcc, {tmp}")
    a(f"""s_cmp_eq_u64 vcc, exec
    s_cbranch_scc1 {dn}
    s_sleep 2
    s_sub_u32 {cnt}, {cnt}, 1
    s_cmp_lg_u32 {cnt}, 0
    s_cbranch_scc1 {lp}
    {dn}:
    s_mov_b64 exec, -1""")

def post(a, voff, soff):
    a(f"v_mov_b32 v27, s94\nbuffer_store_dword v27, v{voff}, {WS}, {soff} offen sc1")

def post_strided(a, n, soff):
    a(f"""v_lshlrev_b32 v26, 7, v1
    v_cmp_gt_u32 vcc, {n}, v1
    v_mov_b32 v27, {OOB}
    s_nop 0
    v_cndmask_b32 v26, v27, v26, vcc""")
    post(a, 26, soff)

def issue(a, slot, va, vb, sa, sb, sc="", part=None):
    lst = []
    for n in range(4):
        lst.append(f"s_add_u32 m0, s56, {slot*SLOT + n*1024}\ns_nop 0\nbuffer_load_dwordx4 v{va+n}, s[40:43], {sa} offen {sc} lds")
    for n in range(6):
        lst.append(f"s_add_u32 m0, s57, {slot*SLOT + n*1024}\ns_nop 0\nbuffer_load_dwordx4 v{vb+n}, s[44:47], {sb} offen lds")
    if part: lst = lst[part[0]:part[1]]
    for x in lst: a(x)

class LQ:
    def __init__(self, a): self.a = a; self.q = []
    def rd(self, x, tag): self.a(x[0]); self.q.append((tag, x[1]))
    def mm(self, m, tag):
        pos = [k for k, e in enumerate(self.q) if e[0] == tag and e[1] in m[1]]
        if pos:
            k = max(pos); self.a(f"s_waitcnt lgkmcnt({min(15, len(self.q)-1-k)})"); del self.q[:k+1]
        self.a(m[0])

def compute_loop(a, adr, nadr, reads, mfmas, seq):
    n = len(seq)
    packed = sum(x << (2*k) for k, x in enumerate(seq[1:]))
    a(f"s_mov_b32 s60, 0\ns_mov_b32 s61, {seq[0]}\ns_mov_b32 s64, {packed}")
    L = LQ(a)
    for st in range(2):
        for r in reads(st, st): L.rd(r, st)
    loop = a.lab("L_gl"); last = a.lab("L_gl_last")
    a(f"{loop}:")
    def interleave(ms, buf, nb):
        rs = reads(nb, nb); k = 0
        for m in ms:
            L.mm(m, buf)
            for x in rs[k:k+2]: L.rd(x, nb)
            k += 2
        for x in rs[k:]: L.rd(x, nb)
    interleave(mfmas(0), 0, 2)
    interleave(mfmas(1), 1, 3)
    a(f"s_cmp_eq_u32 s60, {n-1}\ns_cbranch_scc1 {last}")
    qsave = list(L.q)
    ms = mfmas(2)
    L.mm(ms[0], 2)
    a(f"""s_and_b32 s65, s64, 3
    s_lshr_b32 s64, s64, 2
    s_sub_u32 s62, s65, s61
    s_mul_i32 s62, s62, {SLOT}
    s_mov_b32 s61, s65""")
    L.mm(ms[1], 2)
    a("s_waitcnt lgkmcnt(0)\ns_barrier"); del L.q[:]
    for k in range(nadr): a(f"v_add_u32 v{adr+k}, s62, v{adr+k}")
    interleave(ms[2:], 2, 0)
    interleave(mfmas(3), 3, 1)
    a(f"s_add_u32 s60, s60, 1\ns_branch {loop}")
    a(f"{last}:")
    L.q[:] = qsave
    for m in ms: L.mm(m, 2)
    for m in mfmas(3): L.mm(m, 3)
    a("s_nop 15\ns_nop 3")

def chunk_seq(a, n, advance, reads, mfmas, per, hook=None, fill=None):
    L = LQ(a)
    fill = list(fill or [])
    def allreads(i): return [(x, 4*(i & 1) + st) for st in range(4) for x in reads(st, 4*(i & 1) + st)]
    for x, t in allreads(0): L.rd(x, t)
    for i in range(n):
        ms = [(m, 4*(i & 1) + st) for st in range(4) for m in mfmas(4*(i & 1) + st, i == 0 and st == 0)]
        rs = []
        pre = 2 if i > 0 else 6
        for m, t in ms[:pre]: L.mm(m, t)
        if i + 1 < n:
            if hook: hook(i)
            a("s_waitcnt lgkmcnt(0)\ns_barrier"); del L.q[:]
            advance(i + 1)
            rs = allreads(i + 1)
        p = per if i > 0 else -(-len(rs) // (len(ms) - pre))
        k = 0
        for m, t in ms[pre:]:
            for x, tt in rs[k:k+p]: L.rd(x, tt)
            k += p
            if fill: a(fill.pop(0))
            L.mm(m, t)
        for x, tt in rs[k:]: L.rd(x, tt)
    for x in fill: a(x)
    a("s_nop 15\ns_nop 3")

def adr_kc(a, dst, sbase):
    a(f"v_lshlrev_b32 v30, 7, v2\nv_add_u32 v30, {sbase}, v30")
    for s in range(4):
        a(f"v_or_b32 v31, {2*s}, v3\nv_xor_b32 v31, v31, v7\nv_lshl_add_u32 v{dst+s}, v31, 4, v30")

def voff_kc(a, dst, n, rowstep):
    a(f"""v_lshrrev_b32 v31, 4, v1
    v_and_b32 v29, 7, v1
    v_xor_b32 v31, v31, v29
    v_lshl_add_u32 v{dst}, v31, 4, v30
    v_xor_b32 v31, 64, v{dst}""")
    for i in range(1, n):
        a(f"v_add_u32 v{dst+i}, {i*rowstep*1152}, v{31 if i & 1 else dst}")

S0 = 32; OA = 96; P0 = 128; QM = 144; QL = 152; KM = 156; KL = 164; VB = 168
VAK = 10; VAL = 11; VAV = 12
GROUPS = [1, 1, 6]
ACC = 32; FR0 = 128; ADR = 8; EPI = 16
ADR3 = 184; ACC3 = 208; ACCO = 160; DV = 190; F3 = 32
def frag(buf, k): return FR0 + 20 * buf + 4 * k
def acc(mt, c): return ACC + 16 * (3 * mt + c)

def gen(a):
    name = NAME
    khead(a, name)
    a("""s_load_dwordx16 s[4:19], s[0:1], 0
    s_load_dwordx8 s[20:27], s[0:1], 64
    s_load_dwordx4 s[28:31], s[0:1], 96
    s_load_dwordx2 s[32:33], s[0:1], 112
    v_lshrrev_b32 v1, 6, v0
    s_cmp_ge_u32 s2, 256
    v_readfirstlane_b32 s3, v1
    s_cbranch_scc1 L_exit""")
    stamp_init(a); stamp(a, 0)
    a("""s_and_b32 s34, s2, 7
    s_lshr_b32 s35, s2, 3
    s_and_b32 s58, s2, 1
    s_lshl_b32 s58, s58, 3
    s_and_b32 s59, s35, 7
    s_add_u32 s58, s58, s59
    s_lshr_b32 s59, s34, 1
    s_lshl_b32 s59, s59, 2
    s_lshr_b32 s60, s2, 6
    s_add_u32 s59, s59, s60
    v_and_b32 v1, 63, v0
    s_cmp_ge_u32 s3, 4
    s_cbranch_scc0 L_comp""")
    a("""s_sub_u32 s69, s3, 4
    s_lshl_b32 s56, s69, 12
    s_mul_i32 s57, s69, 6144
    s_add_u32 s57, s57, 16384
    s_lshl_b32 s60, s58, 2
    s_add_u32 s60, s60, s69
    s_mul_i32 s60, s60, 36864
""")
    if ROT:
        a("""    s_and_b32 s63, s35, 7
    s_lshr_b32 s61, s35, 3
    s_lshl_b32 s61, s61, 1
    s_add_u32 s63, s63, s61
    s_add_u32 s63, s63, s34
    s_mul_i32 s61, s63, 57
    s_lshr_b32 s61, s61, 9
    s_mul_i32 s61, s61, 9
    s_sub_u32 s63, s63, s61
""")
    else:
        a("s_mov_b32 s63, 0")
    a("""    s_cmp_ge_u32 s59, 9
    s_cbranch_scc1 L_ldu""")
    a("v_lshrrev_b32 v30, 3, v1\nv_mul_u32_u24 v30, 1152, v30")
    voff_kc(a, 10, 4, 8)
    for n in range(3):
        a(f"""v_add_u32 v28, {64*n}, v1
        v_mul_u32_u24 v30, 2731, v28
        v_lshrrev_b32 v30, 16, v30
        v_mul_u32_u24 v29, 24, v30
        v_sub_u32 v29, v28, v29
        v_bfe_u32 v31, v30, 1, 1
        v_lshlrev_b32 v31, 2, v31
        v_xor_b32 v29, v29, v31
        v_mul_u32_u24 v30, 3456, v30
        v_lshl_add_u32 v{14+n}, v29, 4, v30
        v_add_u32 v{17+n}, {8*3456}, v{14+n}""")
    a(f"""s_mul_i32 s61, s69, {16*3456}
    s_mul_i32 s62, s59, 384
    s_add_u32 s61, s61, s62
    s_mov_b32 s62, {64*3456}
    s_waitcnt lgkmcnt(0)""")
    srd(a, 40, 4, 2048*1152)
    srd(a, 44, 6, 576*3456)
    a("s_branch L_ldgo\nL_ldu:")
    a("""v_bfe_u32 v30, v1, 3, 1
    v_lshlrev_b32 v30, 4, v30
    v_bfe_u32 v31, v1, 5, 1
    v_lshl_add_u32 v30, v31, 3, v30
    v_bfe_u32 v31, v1, 4, 1
    v_add_u32 v30, v30, v31
    v_mul_u32_u24 v30, 1152, v30""")
    voff_kc(a, 10, 4, 2)
    a("v_lshrrev_b32 v30, 3, v1\nv_mul_u32_u24 v30, 1152, v30")
    voff_kc(a, 14, 6, 8)
    a(f"""s_sub_u32 s61, s59, 9
    s_lshl_b32 s61, s61, 1
    s_and_b32 s62, s69, 1
    s_add_u32 s61, s61, s62
    s_mul_i32 s61, s61, {48*1152}
    s_mov_b32 s62, 128
    s_waitcnt lgkmcnt(0)
    s_cmp_ge_u32 s69, 2
    s_cselect_b32 s44, s18, s16
    s_cselect_b32 s45, s19, s17
    s_mov_b32 s46, {576*1152}
    s_mov_b32 s47, 0x00020000""")
    srd(a, 40, 10, 2048*1152)
    a("L_ldgo:")
    srd(a, 36, 32, WS_USED)
    srd(a, 52, 30, 256)
    a("s_cmp_ge_u32 s59, 15\ns_cbranch_scc1 L_h_p1d")
    stamp(a, 1)
    def p1_soff():
        a("""s_lshl_b32 s48, s63, 7
        s_add_u32 s48, s48, s60
        s_mul_i32 s49, s63, s62
        s_add_u32 s49, s49, s61
        s_add_u32 s63, s63, 1
        s_cmp_eq_u32 s63, 9
        s_cselect_b32 s63, 0, s63""")
    p1_soff(); issue(a, 0, 10, 14, "s48", "s49")
    p1_soff(); issue(a, 1, 10, 14, "s48", "s49", part=(0, 4))
    a("s_waitcnt vmcnt(4)")
    stamp(a, 2)
    a("s_barrier")
    issue(a, 1, 10, 14, "s48", "s49", part=(4, 10))
    issued = 2
    for i in range(9):
        if i > 0:
            a(f"s_waitcnt vmcnt({10*(issued-1-i)})\ns_barrier")
        lim = min(9, i + 4) if i > 0 else 3
        while issued < lim:
            p1_soff(); issue(a, issued % 4, 10, 14, "s48", "s49"); issued += 1
    a("L_h_p1d:")
    gen_scan_pre(a, 0)
    a(f"""v_and_b32 v28, 31, v1
    v_mul_u32_u24 v29, 9, v28
    v_lshrrev_b32 v29, 2, v29
    v_lshrrev_b32 v30, 5, v1
    v_lshl_add_u32 v29, v30, 1, v29
    v_mul_u32_u24 v29, 43, v29
    v_lshrrev_b32 v29, 10, v29
    v_mul_u32_u24 v28, 384, v28
    v_lshl_add_u32 v28, v30, 6, v28
    s_mul_i32 s60, s59, 43
    s_lshr_b32 s60, s60, 7
    s_mul_i32 s61, s60, 3
    s_sub_u32 s61, s59, s61
    v_cmp_eq_u32 vcc, s61, v29
    v_mov_b32 v30, {OOB}
    s_lshl_b32 s48, s60, 7
    v_cndmask_b32 v9, v30, v28, vcc
    s_lshl_b32 s61, s58, 2
    s_add_u32 s48, s48, s61
    s_add_u32 s48, s48, {MB_QKV}
    s_sub_u32 s49, s59, 9
    s_lshl_b32 s49, s49, 10
    s_add_u32 s49, s49, s61
    s_add_u32 s49, s49, {MB_U}
""")
    head_geom(a)
    a(f"s_mul_i32 s50, s40, 384\ns_add_u32 s50, s50, {MB_QKV}")
    a(f"""v_and_b32 v2, 31, v0
    v_bfe_u32 v3, v0, 5, 1
    v_lshlrev_b32 v10, 15, v3
    v_lshl_add_u32 v10, v2, 4, v10
    v_lshlrev_b32 v11, 4, v1
    s_lshl_b32 s60, s43, 15
    s_lshl_b32 s64, s69, 10
    s_add_u32 s60, s60, s64
    s_add_u32 s60, s60, {KF_OFF}
    s_add_u32 s61, s44, s64
    s_add_u32 s61, s61, {KF_OFF}
    s_mul_i32 s62, s40, 288
    s_add_u32 s62, s62, {VF_OFF}
    s_and_b32 s65, s69, 1
    s_lshl_b32 s65, s65, 10
    s_lshl_b32 s66, s69, 11
    s_lshl_b32 s67, s69, 9
    v_lshlrev_b32 v12, 3, v1
    v_add_u32 v12, s67, v12""")
    for e in range(3):
        a(f"""s_lshr_b32 s51, {"s64" if e < 2 else "s65"}, 4
        v_add_u32 v28, s51, v1
        v_add_u32 v28, {256*e}, v28
        v_mul_u32_u24 v29, 3450, v28
        v_lshrrev_b32 v29, 16, v29
        v_mul_u32_u24 v30, 19, v29
        v_sub_u32 v30, v28, v30
        v_cmp_gt_u32 vcc, 18, v30
        v_cmp_gt_u32 s[{40+2*e}:{41+2*e}], 32, v29
        v_mul_u32_u24 v29, {VG}, v29
        v_lshl_add_u32 v{14+e}, v30, 4, v29
        s_and_b64 s[{40+2*e}:{41+2*e}], s[{40+2*e}:{41+2*e}], vcc""")
    a("""v_lshrrev_b32 v30, 3, v1
    v_lshlrev_b32 v30, 12, v30
    v_bfe_u32 v31, v1, 4, 1
    v_lshlrev_b32 v31, 2, v31
    v_and_b32 v29, 7, v1
    v_xor_b32 v31, v31, v29
    v_lshl_add_u32 v228, v31, 4, v30""")
    for n in range(1, 4): a(f"v_add_u32 v{228+n}, {n*8*4096}, v228")
    a("v_lshrrev_b32 v30, 3, v1\nv_mul_u32_u24 v30, 1152, v30")
    voff_kc(a, 232, 6, 8)
    for n in range(4): a(f"v_lshlrev_b32 v{238+n}, 4, v1\nv_add_u32 v{238+n}, {n*GS}, v{238+n}")
    a("s_and_b32 s51, s69, 1\ns_mul_i32 s51, s51, 384")
    for n in range(6):
        a(f"""v_add_u32 v28, s51, v1
        v_add_u32 v28, {64*n}, v28
        v_mul_u32_u24 v30, 5462, v28
        v_lshrrev_b32 v30, 16, v30
        v_mul_u32_u24 v29, 12, v30
        v_sub_u32 v29, v28, v29
        v_lshrrev_b32 v28, 4, v30
        v_mul_u32_u24 v28, 18, v28
        v_bfe_u32 v31, v30, 3, 1
        v_lshl_add_u32 v28, v31, 2, v28
        v_bfe_u32 v31, v30, 2, 1
        v_lshl_add_u32 v28, v31, 3, v28
        v_and_b32 v31, 3, v30
        v_add_u32 v28, v28, v31
        v_mul_u32_u24 v28, 1152, v28
        v_lshl_add_u32 v{242+n}, v29, 4, v28
        v_lshrrev_b32 v28, 1, v30
        v_mul_u32_u24 v28, 18, v28
        v_and_b32 v31, 1, v30
        v_add_u32 v28, v28, v31
        v_add_u32 v28, 16, v28
        v_mul_u32_u24 v28, 1152, v28
        v_lshl_add_u32 v{248+n}, v29, 4, v28""")
    a("v_and_b32 v28, 31, v1\nv_lshrrev_b32 v29, 5, v1\nv_lshl_add_u32 v28, v29, 6, v28\nv_lshlrev_b32 v254, 12, v28\nv_lshlrev_b32 v255, 7, v1")
    gen_scan_pre(a, 1)
    a(f"v_mov_b32 v28, {NONCE_LDS}")
    stamp(a, 3)
    a("""s_barrier
    ds_read_b32 v29, v28
    s_waitcnt lgkmcnt(0)
    v_readfirstlane_b32 s94, v29
    s_cmp_lg_u32 s69, 0
    s_cbranch_scc1 L_h_p2
    s_cmp_ge_u32 s59, 9
    s_cbranch_scc1 L_h_sigu""")
    post(a, 9, "s48")
    a("s_branch L_h_p2\nL_h_sigu:\ns_cmp_ge_u32 s59, 15\ns_cbranch_scc1 L_h_p2")
    post_strided(a, 8, "s49")
    a("L_h_p2:")
    a(f"""s_mul_i32 s48, s69, {2*UNIT}
    v_mul_u32_u24 v28, {UNIT}, v3
    v_mul_u32_u24 v29, 304, v2
    v_add3_u32 v28, v28, v29, s48
    v_mov_b32 v20, 0x3f803f80
    v_mov_b32 v21, 0x3f803f80
    v_mov_b32 v22, 0x3f803f80
    v_mov_b32 v23, 0x3f803f80
    ds_write_b128 v28, v[20:23] offset:{10240+288}""")
    a("s_cmp_lg_u32 s69, 0\ns_cbranch_scc1 L_h_kv")
    poll(a, "s50", 48, True, "s[46:47]")
    a("L_h_kv:")
    stamp(a, 4)
    a("s_barrier")
    def unit(u):
        a(f"s_add_u32 s48, s61, {u*4096}\nbuffer_load_dwordx2 {vr(32+2*u,2)}, v11, {WS}, s48 offen {SC}")
        for e in range(2):
            a(f"s_add_u32 m0, s66, {u*UNIT + e*1024}\ns_add_u32 s48, s60, {u*4096 + e*512}\nbuffer_load_dwordx4 v10, {WS}, s48 offen {SC} lds")
        a(f"s_add_u32 s48, s62, {u*32*VG}")
        for e in range(3):
            a(f"s_add_u32 m0, {'s64' if e < 2 else 's65'}, {u*UNIT + 10240 + e*4096}\ns_mov_b64 exec, s[{40+2*e}:{41+2*e}]\nbuffer_load_dwordx4 v{14+e}, {WS}, s48 offen {SC} lds")
        a("s_mov_b64 exec, -1")
    def unit_fin(us):
        for u in us:
            lo = u*UNIT + 8192
            if lo > 65535 - 2048:
                a(f"v_add_u32 v13, {lo}, v12\nds_write_b64 v13, {vr(32+2*u,2)}")
            else:
                a(f"ds_write_b64 v12, {vr(32+2*u,2)} offset:{lo}")
        a("s_waitcnt lgkmcnt(0)")
    g0, g1, g2 = GROUPS
    for u in range(g0 + g1): unit(u)
    a(f"s_waitcnt vmcnt({6*g1})"); unit_fin(range(g0))
    stamp(a, 5)
    a("s_barrier")
    for u in range(g0 + g1, 8): unit(u)
    a(f"s_waitcnt vmcnt({6*g2})"); unit_fin(range(g0, g0 + g1)); a("s_barrier")
    a("s_waitcnt vmcnt(0)"); unit_fin(range(g0 + g1, 8))
    gen_scan_load(a)
    a("L_h_scanl:\ns_barrier")
    stamp(a, 6)
    a("s_cmp_ge_u32 s95, 576\ns_cbranch_scc1 L_h_scand\ns_setprio 3")
    gen_scan(a)
    a("L_h_scand:\ns_setprio 3")
    stamp(a, 7)
    gen_prefetch(a)
    a(f"""s_lshl_b32 s60, s35, 2
    s_add_u32 s60, s60, s69
    s_cmp_eq_u32 s60, 127
    s_cbranch_scc0 L_h_noagg
    s_mul_i32 s60, s34, 384
    s_add_u32 s60, s60, {MB_S}""")
    poll(a, "s60", 36, True)
    a(f"s_lshl_b32 s60, s34, 2\ns_add_u32 s60, s60, {MB_H}")
    post_strided(a, 64, "s60")
    a("L_h_noagg:")
    a("s_cmp_ge_u32 s35, 24\ns_cbranch_scc1 L_h_nop3")
    p3_geom(a)
    a(f"""s_lshr_b32 s60, s69, 1
    s_mul_i32 s60, s60, {576*4096}
    s_and_b32 s61, s69, 1
    s_lshl_b32 s62, s61, 17
    s_add_u32 s60, s60, s62
    s_and_b32 s62, s58, 3
    s_lshl_b32 s62, s62, 10
    s_add_u32 s60, s60, s62
    s_lshr_b32 s62, s58, 2
    s_lshl_b32 s62, s62, 7
    s_add_u32 s60, s60, s62
    s_add_u32 s60, s60, {HT_OFF}
    s_lshl_b32 s62, s59, 1
    s_add_u32 s61, s61, s62
    s_mul_i32 s61, s61, {48*1152}
    s_cmp_ge_u32 s69, 2
    s_cselect_b32 s44, s22, s20
    s_cselect_b32 s45, s23, s21
    s_mov_b32 s46, {576*1152}
    s_mov_b32 s47, 0x00020000""")
    srd(a, 40, 32, WS_USED)
    a(f"""s_lshr_b32 s64, s69, 1
    s_mul_i32 s51, s59, 192
    s_mul_i32 s63, s64, {4*72*1152}
    s_add_u32 s63, s63, s51
    s_and_b32 s65, s69, 1
    s_lshl_b32 s62, s65, 17
    s_lshl_b32 s65, s58, 10
    s_add_u32 s62, s62, s65
    s_add_u32 s62, s62, {OF_OFF}
    s_add_u32 s50, s62, {64*GS}
    s_lshl_b32 s65, s64, 20
    s_add_u32 s62, s62, s65
    s_cmp_eq_u32 s64, 0
    s_cselect_b32 s50, s50, {OOB}
    s_cselect_b32 s51, s51, {OOB}
    s_and_b32 s65, s2, 63
    s_lshl_b32 s65, s65, 7
    s_add_u32 s65, s65, {MB_H}""")
    srd(a, 52, 8, 576*1152)
    poll(a, "s65", 8)
    stamp(a, 8)
    if HTOUCH:
        for q in range(3):
            a(f"s_add_u32 s48, s60, {(3+2*q)*64*4096}\nbuffer_load_dword v{20+q}, v254, {WS}, s48 offen {SC}")
    a("s_waitcnt vmcnt(0)\ns_barrier")
    def dmaC(ch, slot):
        for n in range(4):
            a(f"s_add_u32 m0, s56, {slot*SLOT + n*1024}\ns_add_u32 s48, s60, {ch*64*4096}\nbuffer_load_dwordx4 v{228+n}, s[40:43], s48 offen {SC} lds")
        for n in range(6):
            a(f"s_add_u32 m0, s57, {slot*SLOT + n*1024}\ns_add_u32 s49, s61, {ch*128}\nbuffer_load_dwordx4 v{232+n}, s[44:47], s49 offen lds")
    def dmaOA(q):
        for n in range(4):
            a(f"s_add_u32 m0, s56, {SEQO[0][q]*8192 + n*1024}\ns_add_u32 s48, {'s62' if q < 4 else 's50'}, {q*8*GS if q < 4 else 0}\nbuffer_load_dwordx4 v{238+n}, s[40:43], s48 offen {SC} lds")
    def dmaOB(q):
        for n in range(6):
            a(f"s_add_u32 m0, s57, {SEQO[1][q]*8192 + n*1024}\ns_add_u32 s49, {'s63' if q < 4 else 's51'}, {q*72*1152 if q < 4 else 0}\nbuffer_load_dwordx4 v{(242 if q < 4 else 248)+n}, s[52:55], s49 offen lds")
    def bar(vm=None):
        if vm is not None: a(f"s_waitcnt vmcnt({vm})")
        a("s_barrier")
    dmaC(0, 0); dmaC(1, 1); dmaC(2, 2)
    bar(0); dmaC(3, 3)
    bar(); dmaC(4, 0)
    bar(); dmaC(5, 1)
    bar(20); dmaC(6, 2)
    bar(20); dmaC(7, 3)
    bar(20); dmaC(8, 0)
    bar(20); dmaOB(0)
    bar(16); dmaOB(1)
    bar(12)
    stamp(a, 9)
    dmaOA(0); dmaOA(1)
    bar(); dmaOA(2); dmaOB(2)
    bar(14); dmaOA(3); dmaOB(3)
    bar(20); dmaOA(4); dmaOB(4)
    bar(20)
    bar(10)
    bar(0)
    endk(a)
    a("L_h_nop3:\ns_barrier")
    endk(a)
    a("L_comp:")
    a("""v_and_b32 v2, 31, v0
    v_bfe_u32 v3, v0, 5, 1
    v_bfe_u32 v4, v0, 2, 2
    v_bfe_u32 v5, v0, 4, 1
    v_lshlrev_b32 v5, 5, v5
    v_and_b32 v6, 3, v0
    v_lshl_add_u32 v5, v6, 3, v5
    v_bfe_u32 v6, v0, 3, 1
    v_bfe_u32 v7, v0, 1, 3
    s_and_b32 s56, s3, 1
    s_lshr_b32 s57, s3, 1
    s_waitcnt lgkmcnt(0)""")
    srd(a, 36, 32, WS_USED)
    srd(a, 52, 30, 256)
    a(f"""s_cmp_lg_u32 s3, 0
    s_cbranch_scc1 L_c_nn
    s_memrealtime s[60:61]
    s_waitcnt lgkmcnt(0)
    s_or_b32 s60, s60, 1
    s_mov_b64 exec, 1
    v_mov_b32 v20, s60
    v_mov_b32 v21, 0
    v_mov_b32 v22, s60
    buffer_atomic_cmpswap v[20:21], v21, {DBG}, 0 offen sc0 sc1
    s_mov_b64 exec, -1
    L_c_nn:""")
    if TOUCH1:
        a(f"""s_cmp_ge_u32 s59, 15
        s_cbranch_scc1 L_notouch
        s_cmp_ge_u32 s59, 9
        s_cselect_b32 s40, s10, s4
        s_cselect_b32 s41, s11, s5
        s_mov_b32 s42, {2048*1152}
        s_mov_b32 s43, 0x00020000
        s_lshl_b32 s60, s58, 2
        s_lshr_b32 s61, s35, 3
        s_add_u32 s60, s60, s61
        s_mul_i32 s60, s60, 36864
        s_lshl_b32 s61, s3, 8
        s_add_u32 s60, s60, s61
        v_mul_u32_u24 v28, 1152, v2
        v_lshl_add_u32 v28, v3, 7, v28
        v_mov_b32 v18, v28
        s_add_u32 s50, s60, 128
        s_and_b32 s62, s35, 7
        v_cmp_gt_u32 vcc, 24, v2
        v_mov_b32 v30, {OOB}
        s_cmp_ge_u32 s59, 9
        s_cbranch_scc1 L_touchu
        v_mul_u32_u24 v28, 43, v2
        v_lshrrev_b32 v28, 7, v28
        v_mul_u32_u24 v29, 3, v28
        v_sub_u32 v29, v2, v29
        v_lshl_add_u32 v28, v3, 6, v28
        v_mul_u32_u24 v28, 3456, v28
        v_lshl_add_u32 v28, v29, 7, v28
        v_cndmask_b32 v28, v30, v28, vcc
        s_lshl_b32 s60, s3, 7
        s_lshl_b32 s62, s62, 3
        s_add_u32 s60, s60, s62
        s_add_u32 s60, s60, 64
        s_mul_i32 s60, s60, 3456
        s_mul_i32 s62, s59, 384
        s_add_u32 s60, s60, s62""")
        srd(a, 44, 6, 576*3456)
        a(f"""s_branch L_touchb
        L_touchu:
        v_cndmask_b32 v28, v30, v28, vcc
        s_cmp_ge_u32 s62, 4
        s_cselect_b32 s44, s18, s16
        s_cselect_b32 s45, s19, s17
        s_mov_b32 s46, {576*1152}
        s_mov_b32 s47, 0x00020000
        s_and_b32 s62, s62, 3
        s_sub_u32 s60, s59, 9
        s_lshl_b32 s60, s60, 2
        s_add_u32 s60, s60, s62
        s_mul_i32 s60, s60, {24*1152}
        s_add_u32 s60, s60, s61
        s_add_u32 s60, s60, 128
        L_touchb:
        v_mov_b32 v19, v28
        s_mov_b32 s51, s60
        L_notouch:""")
    if CODEWARM:
        a(f"""s_getpc_b64 s[60:61]
        L_pc:
        s_add_u32 s60, s60, {NAME}-L_pc
        s_addc_u32 s61, s61, -1
        s_lshl_b32 s62, s3, 13
        v_lshlrev_b32 v23, 7, v1
        v_add_u32 v23, s62, v23
        v_cmp_gt_u32 vcc, L_exit-{NAME}, v23
        s_and_saveexec_b64 s[62:63], vcc
        s_cbranch_execz L_nowarm
        global_load_dword v17, v23, s[60:61]
        L_nowarm:
        s_mov_b64 exec, -1""")
    a("s_cmp_ge_u32 s59, 15\ns_cbranch_scc1 L_c_p1d")
    a("s_lshl_b32 s66, s56, 13")
    adr_kc(a, ADR, "s66")
    for i in range(96): a(f"v_mov_b32 v{ACC+i}, 0")
    a("s_lshl_b32 s67, s58, 2\ns_lshl_b32 s68, s56, 1\ns_add_u32 s67, s67, s68")
    a("s_cmp_ge_u32 s59, 9\ns_cbranch_scc1 L_cu")
    def adr_w(inrow):
        a(f"v_lshl_add_u32 v30, v3, 3, v4\nv_mul_u32_u24 v30, 384, v30\nv_add_u32 v30, v30, v{inrow}\ns_mul_i32 s66, s57, 3")
        for c in range(3):
            a(f"s_add_u32 s63, s66, {c}\nv_xor_b32 v31, s63, v6\nv_lshl_add_u32 v{ADR+4+c}, v31, 6, v30")
    def reads_w(s, buf):
        return [(rdtr(frag(buf, 2 + c) + 2 * e, ADR + 4 + c, 16384 + (16 * s + 4 * e) * 384), 2 + c) for c in range(3) for e in range(2)]
    def reads_xw(s, buf):
        w = reads_w(s, buf)
        return [(rd128(frag(buf, 0), ADR + s, 0), 0)] + w[:2] + [(rd128(frag(buf, 1), ADR + s, 4096), 1)] + w[2:]
    def p1_end():
        a("s_branch L_c_p1d")
    def touch():
        l = a.lab("L_nt")
        a(f"""s_cmp_lt_u32 s3, {TOUCHW}
        s_cbranch_scc1 {l}
        buffer_load_dword v24, v18, s[40:43], s50 offen
        buffer_load_dword v25, v19, s[44:47], s51 offen
        {l}:""")
    def p1_start():
        stamp(a, 1)
        if TOUCH1 == 2: touch()
        a("s_barrier"); stamp(a, 2)
        if TOUCH1 == 1: touch()
    a("s_cmp_ge_u32 s59, 6\ns_cbranch_scc1 L_cv")
    a("""v_bfe_u32 v28, v0, 4, 1
    v_lshlrev_b32 v28, 5, v28
    v_and_b32 v29, 1, v0
    v_lshl_add_u32 v28, v29, 4, v28
    v_bfe_u32 v29, v0, 1, 1
    v_lshl_add_u32 v28, v29, 3, v28""")
    adr_w(28)
    a(f"v_lshlrev_b32 v{EPI}, 15, v3\nv_lshl_add_u32 v{EPI}, v2, 4, v{EPI}")
    p1_start()
    compute_loop(a, ADR, 7, reads_xw, lambda buf: [(mf(acc(mt, c), frag(buf, 2 + c), frag(buf, mt)), [mt, 2+c]) for c in range(3) for mt in range(2)], SEQ1)
    stamp(a, 3)
    a(f"""s_cmp_lt_u32 s59, 3
    s_cselect_b32 s66, {f2u(QSCALE)}, 1.0
    s_lshl_b32 s68, s59, 1
    s_add_u32 s68, s68, s57
    s_mul_i32 s68, s68, {12*GS}
    s_lshl_b32 s67, s67, 9
    s_add_u32 s68, s68, s67""")
    t = 0
    for c in range(3):
        for m in range(2):
            a(f"s_add_u32 s63, s68, {(4*c+2*m)*GS}")
            for mt in range(2):
                r = acc(mt, c) + 8 * m
                o = FR0 + 4 * (t % 8); t += 1
                for i in range(8): a(f"v_mul_f32 v{r+i}, s66, v{r+i}")
                for i in range(4): a(f"v_cvt_pk_bf16_f32 v{o+i}, v{r+2*i}, v{r+2*i+1}")
                a(f"buffer_store_dwordx4 {vr(o,4)}, v{EPI}, {WS}, s63 offen offset:{512*mt} {SC}")
    p1_end()
    a("L_cv:")
    adr_w(5)
    a(f"v_mul_u32_u24 v{EPI}, {VG}, v3\nv_lshl_add_u32 v{EPI}, v2, 4, v{EPI}")
    p1_start()
    compute_loop(a, ADR, 7, reads_xw, lambda buf: [(mf(acc(mt, c), frag(buf, mt), frag(buf, 2 + c)), [mt, 2+c]) for c in range(3) for mt in range(2)], SEQ1)
    stamp(a, 3)
    a(f"""s_mul_i32 s68, s67, {4*VG}
    s_sub_u32 s63, s59, 6
    s_lshl_b32 s63, s63, 1
    s_add_u32 s63, s63, s57
    s_mul_i32 s63, s63, 1536
    s_add_u32 s68, s68, s63
    s_add_u32 s68, s68, {VF_OFF}""")
    t = 0
    for mt in range(2):
        for m in range(2):
            a(f"s_add_u32 s63, s68, {(4*mt + 2*m)*VG}")
            for c in range(3):
                r = acc(mt, c) + 8 * m
                o = FR0 + 4 * (t % 8); t += 1
                for i in range(4): a(f"v_cvt_pk_bf16_f32 v{o+i}, v{r+2*i}, v{r+2*i+1}")
                a(f"buffer_store_dwordx4 {vr(o,4)}, v{EPI}, {WS}, s63 offen offset:{512*c} {SC}")
    p1_end()
    a("L_cu:")
    a("s_mul_i32 s66, s57, 12288\ns_add_u32 s66, s66, 16384")
    adr_kc(a, ADR + 4, "s66")
    a(f"v_mul_u32_u24 v{EPI}, 18432, v3\nv_lshl_add_u32 v{EPI}, v2, 4, v{EPI}")
    def reads_u(s, buf):
        return [(rd128(frag(buf, 0), ADR + s, 0), 0), (rd128(frag(buf, 2), ADR + 4 + s, 0), 2), (rd128(frag(buf, 1), ADR + s, 4096), 1),
                (rd128(frag(buf, 3), ADR + 4 + s, 4096), 3), (rd128(frag(buf, 4), ADR + 4 + s, 8192), 4)]
    p1_start()
    compute_loop(a, ADR, 8, reads_u, lambda buf: [(mf(acc(mt, c), frag(buf, mt), frag(buf, 2 + c)), [mt, 2+c]) for c in range(3) for mt in range(2)], SEQ1)
    stamp(a, 3)
    a(f"""s_mul_i32 s68, s67, 73728
    s_mul_i32 s63, s57, 36864
    s_add_u32 s68, s68, s63
    s_sub_u32 s63, s59, 9
    s_mul_i32 s63, s63, 1536
    s_add_u32 s68, s68, s63
    s_add_u32 s68, s68, {UF_OFF}""")
    t = 0
    for mt in range(2):
        for jj in range(2):
            a(f"s_add_u32 s63, s68, {73728*mt + 9216*jj}")
            for c in range(3):
                r = acc(mt, c) + 8 * jj
                o = FR0 + 4 * (t % 8); t += 1
                for i in range(4): a(f"v_cvt_pk_bf16_f32 v{o+i}, v{r+2*i}, v{r+2*i+1}")
                a(f"buffer_store_dwordx4 {vr(o,4)}, v{EPI}, {WS}, s63 offen offset:{512*c} {SC}")
    a("L_c_p1d:")
    stamp(a, 4)
    gen_attn(a)
    gen_p3_comp(a)
    a("L_exit:\ns_endpgm")

def gen_xd_load(a):
    p3_geom(a, 46, 47)
    srd(a, 40, 10, 2048*1152)
    srd(a, 48, 26, 1152)
    a(f"""s_lshr_b32 s66, s46, 2
    s_lshl_b32 s66, s66, 8
    s_lshl_b32 s67, s56, 7
    s_add_u32 s66, s66, s67
    s_lshl_b32 s67, s57, 6
    s_add_u32 s66, s66, s67
    s_and_b32 s67, s46, 3
    s_lshl_b32 s67, s67, 2
    s_add_u32 s66, s66, s67
    v_mul_u32_u24 v28, {2*1152}, v3
    v_lshl_add_u32 v28, v2, 1, v28
    s_mul_i32 s67, s66, 1152
    s_mul_i32 s68, s47, 192
    s_add_u32 s67, s67, s68
    v_lshlrev_b32 v29, 1, v2""")
    for i in range(48): a(f"v_mov_b32 v{ACC3+i}, 0")
    for i in range(4): a(f"v_mov_b32 v{DV+i}, 0")
    for c in range(3):
        a(f"buffer_load_short_d16_hi v{DV+c}, v29, s[48:51], s68 offen offset:{64*c}")
    for r in range(8):
        a(f"s_add_u32 s63, s67, {(32*(r>>2) + ((r&3)>>1) + 16*(r&1))*1152}")
        for c in range(3):
            a(f"buffer_load_short_d16_hi v{ACC3+16*c+r}, v28, s[40:43], s63 offen offset:{64*c}")
    a(f"""s_mul_i32 s52, s66, 4608
    s_mul_i32 s68, s47, 384
    s_add_u32 s52, s52, s68
    s_add_u32 s52, s52, 2304
    s_lshl_b32 s53, s46, 6
    s_lshl_b32 s67, s56, 5
    s_add_u32 s53, s53, s67
    s_lshl_b32 s67, s57, 4
    s_add_u32 s53, s53, s67
    s_mul_i32 s53, s53, 4608
    s_add_u32 s53, s53, s68""")

def head_geom(a):
    a("""s_lshl_b32 s40, s34, 2
    s_lshr_b32 s41, s35, 3
    s_add_u32 s40, s40, s41
    s_and_b32 s95, s35, 7
    s_mul_i32 s42, s40, 9
    s_lshr_b32 s42, s42, 2
    s_and_b32 s45, s40, 3
    s_lshr_b32 s46, s45, 1
    s_add_u32 s43, s42, s46
    s_xor_b32 s44, s46, 1
    s_lshl_b32 s44, s44, 1
    s_add_u32 s44, s44, s42
    s_lshl_b32 s44, s44, 15
    s_lshl_b32 s46, s46, 3
    s_add_u32 s44, s44, s46""")

def p3_geom(a, t=58, c=59):
    a(f"""s_and_b32 s{t}, s34, 3
    s_lshl_b32 s{t}, s{t}, 3
    s_and_b32 s{c}, s35, 7
    s_add_u32 s{t}, s{t}, s{c}
    s_lshr_b32 s{c}, s34, 2
    s_mul_i32 s{c}, s{c}, 3
    s_lshr_b32 s60, s35, 3
    s_add_u32 s{c}, s{c}, s60""")

def gen_attn(a):
    gen_xd_load(a)
    head_geom(a)
    p3_geom(a)
    a(f"""s_lshl_b32 s66, s57, 13
    s_lshl_b32 s62, s57, 5
    v_lshl_add_u32 v30, v3, 3, v4
    v_lshlrev_b32 v29, 7, v30
    v_xor_b32 v31, s62, v5
    v_add_u32 v29, v29, v31
    v_xor_b32 v31, s56, v6
    v_lshl_add_u32 v29, v31, 6, v29
    v_add_u32 v{ADR3+4}, s66, v29
    v_mul_u32_u24 v29, 192, v30
    v_add_u32 v29, v29, v5
    s_mul_i32 s63, s57, 12288
    s_add_u32 s62, s63, {SEQO[1][0]*8192}
    v_add_u32 v5, s62, v29
    s_lshl_b32 s62, s57, 4
    v_xor_b32 v31, s62, v2
    v_lshlrev_b32 v29, 10, v3
    v_lshl_add_u32 v29, v31, 4, v29
    s_lshl_b32 s62, s56, 9
    s_add_u32 s62, s62, s66
    s_add_u32 s62, s62, {SEQO[0][0]*8192}
    v_add_u32 v4, s62, v29
    s_add_u32 s66, s63, 16384""")
    adr_kc(a, ADR3, "s66")
    a(f"""s_mul_i32 s63, s3, 6144
    v_lshlrev_b32 v28, 4, v1
    v_add_u32 v28, {2*SLOT}, v28
    v_add_u32 v6, s63, v28
    s_xor_b32 s63, s3, 2
    s_mul_i32 s63, s63, 6144
    v_add_u32 v7, s63, v28
    s_lshl_b32 s54, s95, 2
    s_add_u32 s54, s54, s3
    s_mul_i32 s54, s54, 768
    s_lshl_b32 s63, s40, 2
    s_add_u32 s54, s54, s63
    s_add_u32 s54, s54, {MB_O}
    s_mul_i32 s55, s58, 6
    s_add_u32 s55, s55, s59
    s_lshl_b32 s55, s55, 7
    s_add_u32 s55, s55, {MB_O}""")
    a(f"""s_lshl_b32 s46, s95, 3
    s_lshl_b32 s47, s3, 1
    s_add_u32 s46, s46, s47
    s_lshl_b32 s47, s46, 9
    s_lshl_b32 s48, s43, 15
    s_add_u32 s48, s48, s47
    s_add_u32 s49, s44, s47
    v_lshlrev_b32 v{VAK}, 4, v1
    v_lshlrev_b32 v13, 15, v3
    v_lshl_add_u32 v13, v2, 4, v13
    v_lshlrev_b32 v14, 30, v3
    v_lshl_add_u32 v14, v2, 4, v14
    v_lshlrev_b32 v{VAL}, 3, v2
    v_add_u32 v{VAL}, 8192, v{VAL}
    v_mov_b32 v8, 0x8000
    v_cmp_gt_u32 vcc, 19, v2
    v_mul_u32_u24 v9, 304, v3
    s_nop 0
    v_cndmask_b32 v8, v8, v2, vcc
    v_cmp_eq_u32 vcc, 28, v2
    s_nop 1
    v_cndmask_b32 v8, v8, 18, vcc
    v_lshl_add_u32 v15, v8, 4, v9
    v_add_u32 v{VAV}, 10240, v15
    v_mul_u32_u24 v8, {2*4608}, v3
    v_lshl_add_u32 v8, v2, 2, v8
    v_mul_u32_u24 v9, {4*4608}, v3
    v_lshl_add_u32 v9, v2, 2, v9""")
    for i in range(32): a(f"v_mov_b32 v{OA+i}, 0")
    for i in range(4): a(f"v_mov_b32 v{P0+12+i}, 0")
    for i in range(4): a(f"v_mov_b32 v{VB+8+4+i}, 0")
    a(f"""s_lshl_b32 s50, s40, 16
    s_add_u32 s50, s50, s47
    s_add_u32 s50, s50, {OF_OFF}
    s_lshr_b32 s51, s40, 2
    s_lshl_b32 s51, s51, 15
    s_add_u32 s51, s51, s47
    s_lshl_b32 s62, s45, 2
    s_add_u32 s51, s51, s62
    s_add_u32 s51, s51, {OF_OFF + 64*GS}
    s_cmp_eq_u32 s45, 3
    s_cselect_b32 s60, 0, -1
    s_cmp_eq_u32 s45, 0
    s_cselect_b32 s61, 0, -1
    s_cmp_eq_u32 s45, 1
    s_cselect_b32 s62, 0, -1
    s_mov_b32 s63, -1
    s_cmp_eq_u32 s45, 2
    s_mov_b32 s64, -1
    s_cselect_b32 s65, 0, -1
    s_setprio 2""")
    a(f"""s_waitcnt vmcnt(27)
    s_cmp_lg_u32 s3, 0
    s_cbranch_scc1 L_c_nn2
    s_mov_b64 exec, 1
    v_cmp_eq_u32 vcc, 0, v20
    v_mov_b32 v21, {NONCE_LDS}
    s_nop 0
    v_cndmask_b32 v20, v20, v22, vcc
    ds_write_b32 v21, v20
    v_readfirstlane_b32 s94, v20
    s_mov_b64 exec, -1
    s_waitcnt lgkmcnt(0)
    L_c_nn2:""")
    stamp(a, 5)
    a("s_barrier")
    a(f"v_mov_b32 v28, {NONCE_LDS}\nds_read_b32 v29, v28\ns_waitcnt lgkmcnt(0)\nv_readfirstlane_b32 s94, v29")
    stamp(a, 6)
    a("s_barrier")
    a(f"""buffer_load_dwordx4 {vr(QM,4)}, v13, {WS}, s48 offen {SC}
    buffer_load_dwordx4 {vr(QM+4,4)}, v13, {WS}, s48 offen offset:512 {SC}
    buffer_load_dwordx2 {vr(QL,2)}, v{VAK}, {WS}, s49 offen {SC}
    s_waitcnt vmcnt(3)""")
    for c in range(3):
        for r in range(0, 8, 2): a(f"v_pk_mul_f32 {vr(ACC3+16*c+r,2)}, {vr(ACC3+16*c+r,2)}, {vr(DV+(c&2),2)} op_sel:[0,{c&1}] op_sel_hi:[1,{c&1}]")
    a(f"""s_waitcnt vmcnt(0)
    v_and_b32 v{QL}, s60, v{QL}
    v_and_b32 v{QL+1}, s61, v{QL+1}
    v_cndmask_b32 v{QM}, 0, v{QM}, s[62:63]
    v_cndmask_b32 v{QM+4}, 0, v{QM+4}, s[62:63]
    v_cndmask_b32 v{QM+3}, 0, v{QM+3}, s[64:65]
    v_cndmask_b32 v{QM+7}, 0, v{QM+7}, s[64:65]
    s_mov_b32 s60, 0
    s_barrier""")
    stamp(a, 7)
    def toff(t, per): return (t // 8) * UNIT + (t % 8) * per
    def rdK(t, buf): return f"ds_read_b128 {vr(KM+4*buf,4)}, v{VAK} offset:{toff(t,1024)}"
    def rdL(t, buf): return f"ds_read_b64 {vr(KL+2*buf,2)}, v{VAL} offset:{toff(t,256)}"
    def rdV(t, m, buf): return f"ds_read_b128 {vr(VB+8*buf+4*m,4)}, v{VAV} offset:{toff(t,1216)+608*m}"
    def qk_a(buf): return mf(S0+32*buf, KM+4*buf, QM, "0")
    def qk_b(buf): return mf(S0+32*buf+16, KM+4*buf, QM+4, "0")
    def qk_l(buf): return f"v_mfma_f32_32x32x4_2b_bf16 {vr(S0+32*buf,32)}, {vr(KL+2*buf,2)}, {vr(QL,2)}, {vr(S0+32*buf,32)}"
    def pv(q, m, buf): return mf(OA+16*q, VB+8*buf+4*m, P0+8*q+4*m)
    def H(k, buf):
        b = S0 + 32*buf + 4*k
        for i in range(4): a(f"v_exp_f32 v{b+i}, v{b+i}")
        a(f"v_cvt_pk_bf16_f32 v{P0+2*k}, v{b}, v{b+1}\nv_cvt_pk_bf16_f32 v{P0+2*k+1}, v{b+2}, v{b+3}")
    a(rdK(0, 0)); a(rdL(0, 0)); a(rdK(1, 1)); a(rdL(1, 1)); a(rdV(0, 0, 0)); a(rdV(0, 1, 0))
    a("s_waitcnt lgkmcnt(4)")
    a(qk_a(0)); a(qk_b(0)); a("s_nop 9"); a(qk_l(0)); a("s_nop 15\ns_nop 3")
    a(".p2align 6\nL_at_loop:")
    barmask = (1 << (GROUPS[0]-1)) | (1 << (GROUPS[0]+GROUPS[1]-1)) | (1 << 6)
    for j in range(8):
        b = j & 1; nb = b ^ 1
        H(0, b); a(pv(1, 1, nb)); a("s_waitcnt lgkmcnt(0)")
        H(1, b); a(qk_a(nb)); a(rdV(j+1, 0, nb))
        H(2, b); a(qk_b(nb)); a(rdV(j+1, 1, nb))
        H(3, b); a(pv(0, 0, b)); a(rdK(j+2, b))
        H(4, b); a(qk_l(nb))
        H(5, b)
        H(6, b); a(pv(0, 1, b)); a(rdL(j+2, b))
        H(7, b); a(pv(1, 0, b))
        if j == 4: a(f"s_bitcmp1_b32 {barmask}, s60")
        if j == 5:
            if asm.STAMP and BARSTAMP:
                a("""s_cbranch_scc0 L_at_nobar
                s_memtime s[98:99]
                s_barrier
                s_memtime s[100:101]
                s_waitcnt lgkmcnt(0)
                s_mov_b32 s73, s77
                s_mov_b32 s75, s79
                s_mov_b32 s77, s81
                s_mov_b32 s79, s83
                s_mov_b32 s81, s98
                s_mov_b32 s83, s100
                L_at_nobar:""")
            else:
                a("s_cbranch_scc0 L_at_nobar\ns_barrier\nL_at_nobar:")
        if j == 6: a("s_add_u32 s60, s60, 1")
        if j == 7:
            a("s_cmp_lt_u32 s60, 8")
            for r in (VAK, VAL, VAV): a(f"v_add_u32 v{r}, {UNIT}, v{r}")
            a("s_cbranch_scc1 L_at_loop")
    a(pv(1, 1, 1))
    a("s_mov_b32 s61, 0")
    stamp(a, 8)
    a("L_at_fin:")
    a("s_nop 15\ns_nop 3\nv_cmp_eq_u32 vcc, 0, v3\ns_nop 1")
    for q in range(2):
        a(f"v_cndmask_b32 v{16+q}, v{OA+16*q+12}, v{OA+16*q+10}, vcc")
    a("s_cmp_lg_u32 s61, 0\ns_cbranch_scc1 L_at_store")
    a("v_min_f32 v18, v16, v17\nv_add_f32 v20, v16, v17\nv_mov_b32 v19, v20")
    for q in range(2):
        o = OA + 16*q
        for i in range(10):
            a(f"v_add_f32 v19, abs(v{o+i}), v19")
    a(f"""v_cmp_le_f32 vcc, {hex(f2u(2.0**-60))}, v18
    s_mov_b64 s[62:63], vcc
    v_cmp_ge_f32 vcc, {hex(f2u(2.0**60))}, v20
    s_and_b64 s[62:63], s[62:63], vcc
    v_cmp_ge_f32 vcc, {hex(f2u(2.0**120))}, v19
    s_and_b64 s[62:63], s[62:63], vcc
    s_cmp_eq_u64 s[62:63], exec
    s_cbranch_scc0 L_at_slow""")
    a("L_at_store:")
    for q in range(2):
        o = OA + 16*q
        a(f"v_rcp_f32 v{16+q}, v{16+q}\ns_nop 0")
        for i in range(10): a(f"v_mul_f32 v{o+i}, v{o+i}, v{16+q}")
        for i in range(5): a(f"v_cvt_pk_bf16_f32 v{P0+8*q+i}, v{o+2*i}, v{o+2*i+1}")
        a(f"buffer_store_dwordx4 {vr(P0+8*q,4)}, v13, {WS}, s50 offen offset:{512*q} {SC}")
        a(f"buffer_store_dword v{P0+8*q+4}, v14, {WS}, s51 offen offset:{512*q} {SC}")
    a("s_setprio 0\ns_branch L_c_p3")
    a("L_at_slow:")
    a(f"""v_lshlrev_b32 v21, 4, v2
    v_mul_u32_u24 v22, {VG}, v3
    v_add_u32 v22, v22, v21
    v_cmp_gt_u32 vcc, 18, v2
    v_mov_b32 v23, {OOB}
    v_mov_b32 v24, 0x3f803f80
    v_cndmask_b32 v22, v23, v22, vcc
    v_cndmask_b32 v24, v24, 0, vcc""")
    def reset():
        a(f"""s_lshl_b32 s62, s43, 15
        s_add_u32 s62, s62, {KF_OFF}
        s_add_u32 s63, s44, {KF_OFF}
        s_mul_i32 s64, s40, 288
        s_add_u32 s64, s64, {VF_OFF}
        s_mov_b32 s60, 0""")
    def qk_plain():
        a(f"""buffer_load_dwordx4 {vr(KM,4)}, v13, {WS}, s62 offen {SC}
        buffer_load_dwordx2 {vr(KL,2)}, v21, {WS}, s63 offen {SC}
        s_waitcnt vmcnt(0)""")
        a(qk_a(0)); a(qk_b(0)); a("s_nop 9"); a(qk_l(0)); a("s_nop 15\ns_nop 3")
    def adv(lab):
        a(f"""s_add_u32 s62, s62, 512
        s_add_u32 s63, s63, 512
        s_add_u32 s64, s64, {4*VG}
        s_add_u32 s60, s60, 1
        s_cmp_lt_u32 s60, 64
        s_cbranch_scc1 {lab}""")
    reset()
    a("v_mov_b32 v18, 0xff800000\nv_mov_b32 v19, 0xff800000\nL_at_slowa:")
    qk_plain()
    for q in range(2):
        for i in range(0, 16, 2):
            a(f"v_max3_f32 v{18+q}, v{S0+16*q+i}, v{S0+16*q+i+1}, v{18+q}")
    adv("L_at_slowa")
    a("""v_xor_b32 v20, 32, v1
    v_lshlrev_b32 v20, 2, v20
    ds_bpermute_b32 v16, v20, v18
    ds_bpermute_b32 v17, v20, v19
    s_waitcnt lgkmcnt(0)
    v_max_f32 v18, v18, v16
    v_max_f32 v19, v19, v17""")
    reset()
    for i in range(32): a(f"v_mov_b32 v{OA+i}, 0")
    a("L_at_slowb:")
    a(f"""buffer_load_dwordx4 {vr(VB,4)}, v22, {WS}, s64 offen {SC}
    s_add_u32 s65, s64, {2*VG}
    buffer_load_dwordx4 {vr(VB+4,4)}, v22, {WS}, s65 offen {SC}""")
    qk_plain()
    for i in range(8): a(f"v_or_b32 v{VB+i}, v{VB+i}, v24")
    for q in range(2):
        for i in range(16): a(f"v_sub_f32 v{S0+16*q+i}, v{S0+16*q+i}, v{18+q}")
    for k in range(8): H(k, 0)
    a("s_nop 1")
    for q in range(2):
        for m in range(2): a(pv(q, m, 0))
    a("s_nop 7")
    adv("L_at_slowb")
    a("s_mov_b32 s61, 1\ns_branch L_at_fin")

def gen_p3_comp(a):
    a("""L_c_p3:
    s_cmp_ge_u32 s35, 24
    s_cbranch_scc0 L_c_p3go
    s_waitcnt vmcnt(0)""")
    post_strided(a, 6, "s54")
    endk(a)
    a("L_c_p3go:\ns_barrier")
    stamp(a, 9)
    srd(a, 40, 28, 2048*4608)
    def fr(buf, k): return F3 + 16*buf + 4*k
    def hook(i):
        if P3STAMP == 3: stamp(a, i + 1)
        if i == POSTAT:
            a("s_waitcnt vmcnt(0)")
            post_strided(a, 6, "s54")
        if i == 6:
            a(f"""s_cmp_lg_u32 s3, 0
            s_cbranch_scc1 L_c_nopoll
            v_lshlrev_b32 v26, 2, v2
            buffer_load_dword v23, v26, {WS}, s55 offen sc1
            L_c_nopoll:""")
        if i == 7:
            a("""s_cmp_lg_u32 s3, 0
            s_cbranch_scc1 L_c_oflag
            s_waitcnt vmcnt(0)
            v_cmp_eq_u32 vcc, s94, v23
            s_cmp_eq_u64 vcc, exec
            s_cbranch_scc1 L_c_oflag""")
            poll(a, "s55", 32, cnt="s44")
            a("L_c_oflag:")
    def reads_c(s, buf):
        return [(rdtr(fr(buf, 0), ADR3 + 4, (16*s)*128), 0), (rdtr(fr(buf, 0) + 2, ADR3 + 4, (16*s+4)*128), 0)] + \
               [(rd128(fr(buf, 1 + c), ADR3 + s, 4096*c), 1 + c) for c in range(3)]
    def adv_c(i):
        if P3STAMP == 2: stamp(a, i)
        for k in range(5): a(f"v_add_u32 v{ADR3+k}, {((SEQC[i]-SEQC[i-1])*SLOT) & 0xffffffff}, v{ADR3+k}")
    chunk_seq(a, 9, adv_c, reads_c, lambda buf, first: [(mf(ACC3 + 16*c, fr(buf, 0), fr(buf, 1 + c)), [0, 1+c]) for c in range(3)], 3, hook=hook)
    if P3STAMP == 1: stamp(a, 1)
    def exchange(accb, first):
        for c in range(3):
            for q in range(2):
                a(f"ds_write_b128 v6, {vr(accb+16*c+8+4*q,4)} offset:{(2*c+q)*1024 + (SLOT if first else 0)}")
        a("s_waitcnt lgkmcnt(0)\ns_barrier")
        if P3STAMP == 1: stamp(a, 2 if first else 5)
        for c in range(3):
            for q in range(2):
                a(f"ds_read_b128 {vr(accb+16*c+8+4*q,4)}, v7 offset:{(2*c+q)*1024 + (SLOT if first else 0)}")
        for c in range(3):
            for q in range(2):
                a(f"s_waitcnt lgkmcnt({5-2*c-q})")
                for r in range(4*q, 4*q+4, 2):
                    a(f"v_pk_add_f32 {vr(accb+16*c+r,2)}, {vr(accb+16*c+r,2)}, {vr(accb+16*c+8+r,2)}")
    def stores(accb, sbase, vo, rowoff):
        out = []
        for r in range(8):
            for c in range(3):
                out.append((f"s_add_u32 s63, {sbase}, {rowoff(r)*4608}\n" if c == 0 else "") + f"buffer_store_dword v{accb+16*c+r}, v{vo}, s[40:43], s63 offen offset:{128*c} {OUTSC}")
        return out
    exchange(ACC3, True)
    if P3STAMP == 1: stamp(a, 3)
    a("s_barrier")
    stamp(a, 10)
    def reads_o(s, buf):
        return [(rd128(fr(buf, 0), 4, 2048*s), 0)] + \
               [(rdtr(fr(buf, 1 + c) + 2*e, 5, 16384 + (16*s + 4*e)*192 + 64*c), 1 + c) for c in range(3) for e in range(2)]
    def adv_o(i):
        for k in range(2): a(f"v_add_u32 v{4+k}, {((SEQO[k][i]-SEQO[k][i-1])*8192) & 0xffffffff}, v{4+k}")
    chunk_seq(a, 5, adv_o, reads_o, lambda buf, first: [(mf(ACCO + 16*c, fr(buf, 0), fr(buf, 1 + c), "0" if first else None), [0, 1+c]) for c in range(3)], 4,
              fill=stores(ACC3, "s52", 8, lambda r: 32*(r>>2) + ((r&3)>>1) + 16*(r&1)))
    if P3STAMP == 1: stamp(a, 4)
    exchange(ACCO, False)
    for x in stores(ACCO, "s53", 9, lambda r: 8*(r>>2) + (r&3)): a(x)
    if P3STAMP == 1: stamp(a, 6)
    endk(a)

def gen_prefetch(a):
    a("""s_lshl_b32 s60, s35, 2
    s_add_u32 s60, s60, s69
    s_lshl_b32 s60, s60, 13""")
    srd(a, 44, 8, 576*1152)
    a("buffer_load_dword v5, v255, s[44:47], s60 offen")
    a(f"s_lshr_b32 s61, s34, 2\ns_mul_i32 s61, s61, {288*1152}\ns_add_u32 s62, s61, {288*1152}\ns_add_u32 s61, s61, s60")
    srd(a, 48, 20, "s62")
    a("buffer_load_dword v6, v255, s[48:51], s61 offen")
    srd(a, 44, 22, "s62")
    a("buffer_load_dword v7, v255, s[44:47], s61 offen")
    a(f"s_and_b32 s61, s34, 3\ns_mul_i32 s61, s61, {512*1152}\ns_add_u32 s62, s61, {512*1152}\ns_add_u32 s61, s61, s60")
    srd(a, 48, 10, "s62")
    a("buffer_load_dword v8, v255, s[48:51], s61 offen")

UR = 64; XR = 96; XI = 128
KC = 160
def gen_scan_pre(a, part):
    if part == 0:
        a("""s_lshl_b32 s61, s69, 5
        s_add_u32 s61, s61, s35
        s_mul_i32 s60, s34, 72
        s_add_u32 s60, s60, s61
        s_cmp_ge_u32 s61, 72
        s_cselect_b32 s93x, 576, s60
        s_lshl_b32 s62, s93x, 1
        v_mov_b32 v4, s62""".replace("s93x", "s47"))
        a("s_mov_b32 s63, s47")
        srd(a, 40, 12, 1152); srd(a, 44, 14, 1152); srd(a, 48, 24, 1152)
        a("""buffer_load_ushort v5, v4, s[40:43], 0 offen
        buffer_load_ushort v6, v4, s[44:47], 0 offen
        buffer_load_ushort v7, v4, s[48:51], 0 offen""")
        return
    L, I, CR, CI = KC, KC+2, KC+4, KC+6
    a(f"""s_mov_b32 s95, s63
    s_waitcnt vmcnt(0)
    v_lshlrev_b32 v5, 16, v5
    v_lshlrev_b32 v6, 16, v6
    v_lshlrev_b32 v7, 16, v7
    v_mul_f32 v7, {hex(f2u(LOG2E))}, v7
    v_exp_f32 v7, v7
    s_nop 0
    v_cvt_pk_bf16_f32 v7, v7, v7
    v_and_b32 v7, 0xffff0000, v7
    v_mul_f32 v28, v7, v5
    v_mul_f32 v29, v7, v6
    v_mul_f32 v28, {hex(f2u(LOG2E))}, v28
    v_exp_f32 v28, v28
    v_mul_f32 v29, 0.15915494309189535, v29
    v_fract_f32 v29, v29
    v_cos_f32 v30, v29
    v_sin_f32 v31, v29
    s_nop 0
    v_mul_f32 v{L}, v28, v30
    v_mul_f32 v{I}, v28, v31
    v_add_f32 v30, -1.0, v{L}
    v_mul_f32 v28, v5, v5
    v_fma_f32 v28, v6, v6, v28
    v_rcp_f32 v28, v28
    v_mul_f32 v{CR}, v30, v5
    v_fma_f32 v{CR}, v{I}, v6, v{CR}
    v_mul_f32 v{CI}, v{I}, v5
    v_fma_f32 v{CI}, -v30, v6, v{CI}
    v_add_f32 v28, v28, v28
    v_mul_f32 v{CR}, v{CR}, v28
    v_mul_f32 v{CI}, v{CI}, v28
    v_sub_f32 v{I}, 0, v{I}
    v_mov_b32 v{L+1}, v{L}
    v_mov_b32 v{I+1}, v{I}
    v_mov_b32 v{CR+1}, v{CR}
    v_mov_b32 v{CI+1}, v{CI}""")
    def csq(dr, di, sr_, si):
        a(f"""v_mul_f32 v28, v{si}, v{si}
        v_mul_f32 v{di}, v{sr_}, v{si}
        v_fma_f32 v{dr}, v{sr_}, v{sr_}, -v28
        v_add_f32 v{di}, v{di}, v{di}""")
    csq(KC+8, KC+9, L, I)
    for _ in range(3): csq(KC+8, KC+9, KC+8, KC+9)
    for k in range(6): csq(KC+10+2*k, KC+11+2*k, KC+8+2*k, KC+9+2*k)
    a(f"""v_lshlrev_b32 v{KC+22}, 2, v1
    s_mov_b32 s51, 73728
    v_mul_lo_u32 v8, v1, s51""")

def gen_scan_load(a):
    a(f"""s_cmp_ge_u32 s95, 576
    s_cbranch_scc1 L_h_scanl
    s_mul_i32 s61, s95, 683
    s_lshr_b32 s61, s61, 16
    s_lshl_b32 s61, s61, 3
    s_add_u32 s61, s61, s34
    s_lshl_b32 s61, s61, 7
    s_add_u32 s61, s61, {MB_U}""")
    poll(a, "s61", 16)
    a(f"s_lshl_b32 s61, s95, 4\ns_add_u32 s61, s61, {UF_OFF}")
    for q in range(8):
        a(f"s_add_u32 s62, s61, {9216*q}\nbuffer_load_dwordx4 {vr(UR+4*q,4)}, v8, {WS}, s62 offen {SC}")

def gen_scan(a):
    L, I, CR, CI, P16, AD = KC, KC+2, KC+4, KC+6, KC+8, KC+22
    a("s_waitcnt vmcnt(0)")
    stamp(a, 10)
    def pk(d, x, y, z=None, neg=""):
        if z is None: a(f"v_pk_mul_f32 {vr(d,2)}, {vr(x,2)}, {vr(y,2)} {neg}")
        else: a(f"v_pk_fma_f32 {vr(d,2)}, {vr(x,2)}, {vr(y,2)}, {vr(z,2)} {neg}")
    NEG0 = "neg_lo:[1,0,0] neg_hi:[1,0,0]"
    for D in range(16):
        a(f"""v_lshlrev_b32 v24, 16, v{UR+D}
        v_and_b32 v25, 0xffff0000, v{UR+D}
        v_lshlrev_b32 v26, 16, v{UR+16+D}
        v_and_b32 v27, 0xffff0000, v{UR+16+D}""")
        pk(XR+2*D, CR, 24)
        pk(XI+2*D, CR, 26, None, "neg_lo:[1,0] neg_hi:[1,0]")
        pk(XR+2*D, CI, 26, XR+2*D, NEG0)
        pk(XI+2*D, CI, 24, XI+2*D, NEG0)
    def step(er, ei, nr, ni, D):
        pk(nr, L, er, XR+2*D)
        pk(ni, L, ei, XI+2*D)
        pk(nr, I, ei, nr, NEG0)
        pk(ni, I, er, ni)
    cur = (XR, XI)
    for D in range(1, 16):
        nx = (24, 26) if D & 1 else (28, 30)
        step(cur[0], cur[1], nx[0], nx[1], D); cur = nx
    def cmac(dr, di, pr, pi, xr, xi, ar, ai):
        a(f"""v_fma_f32 v{dr}, v{pr}, v{xr}, v{ar}
        v_fma_f32 v{di}, v{pr}, v{xi}, v{ai}
        v_fma_f32 v{dr}, -v{pi}, v{xi}, v{dr}
        v_fma_f32 v{di}, v{pi}, v{xr}, v{di}""")
    cmac(28, 29, P16, P16+1, 24, 26, 25, 27)
    for k in range(6):
        d = 1 << k
        a(f"""ds_bpermute_b32 v30, v{AD}, v28 offset:{256-4*d}
        ds_bpermute_b32 v31, v{AD}, v29 offset:{256-4*d}
        s_mov_b32 exec_lo, {hex((~((1 << d) - 1)) & 0xffffffff)}
        s_waitcnt lgkmcnt(0)""")
        cmac(28, 29, KC+10+2*k, KC+11+2*k, 30, 31, 28, 29)
        a("s_mov_b32 exec_lo, -1")
    a(f"""ds_bpermute_b32 v22, v{AD}, v28 offset:252
    ds_bpermute_b32 v30, v{AD}, v29 offset:252
    s_waitcnt lgkmcnt(0)
    v_mov_b32 v28, v22
    s_mov_b64 exec, 1
    v_mov_b32 v28, 0
    v_mov_b32 v30, 0
    s_mov_b64 exec, -1""")
    cmac(29, 31, P16, P16+1, 28, 30, 24, 26)
    cur = (28, 30)
    for D in range(16):
        step(cur[0], cur[1], XR+2*D, XI+2*D, D); cur = (XR+2*D, XI+2*D)
        a(f"v_cvt_pk_bf16_f32 v{UR+D}, v{XR+2*D}, v{XR+2*D+1}\nv_cvt_pk_bf16_f32 v{UR+16+D}, v{XI+2*D}, v{XI+2*D+1}")
    a(f"""s_lshl_b32 s61, s95, 12
    s_add_u32 s61, s61, {HT_OFF}
    s_add_u32 s62, s61, {576*4096}""")
    for q in range(4): a(f"buffer_store_dwordx4 {vr(UR+4*q,4)}, v11, {WS}, s61 offen offset:{1024*q} {SC}")
    for q in range(4): a(f"buffer_store_dwordx4 {vr(UR+16+4*q,4)}, v11, {WS}, s62 offen offset:{1024*q} {SC}")
    a(f"""s_mul_i32 s61, s34, {384 - 288}
    s_lshl_b32 s62, s95, 2
    s_add_u32 s61, s61, s62
    s_add_u32 s61, s61, {MB_S}
    s_waitcnt vmcnt(0)""")
    post_strided(a, 1, "s61")
```

```python
import sys
from asm import *
import asm
import f4 as fused
NAME = "concat_heads__softmax_full_mha__ssm_conv_s5__prompt"
def build():
    ref = open(f"cdna_kernels/{NAME}.s.ref").read().split("\n")
    head = [l for l in ref if l.startswith(";") and "@launch" not in l]
    head += ["; @launch grid=(256,1,1) block=(512,1,1) lds=163840"]
    a = A()
    a('.amdgcn_target "amdgcn-amd-amdhsa--gfx950"\n.text')
    fused.gen(a)
    return "\n".join(head) + "\n" + a.text() + '.section .rodata,"a"\n' + kdesc(fused.NAME, 256)
if __name__ == "__main__":
    if "--stamp" in sys.argv: asm.STAMP = True
    if "--dbg" in sys.argv: asm.STAMP = True; asm.DBGSTAMP = True
    for x in sys.argv:
        if x.startswith('-D'):
            k, v = x[2:].split('='); setattr(fused, k, eval(v))
    out = sys.argv[1] if len(sys.argv) > 1 else f"cdna_kernels/{NAME}.s"
    open(out, "w").write(build())
    print("wrote", out)
```

```python
from asm import *
import asm

GS = 32768
QF_OFF = 0
KF_OFF = 72 * GS
VF_OFF = 144 * GS
VG = 9216
OF_OFF = VF_OFF + 256 * VG
UF_OFF = OF_OFF + 72 * GS
HT_OFF = UF_OFF + 64 * 73728
MB_QKV = HT_OFF + 2 * 576 * 4096
MB_U = MB_QKV + 32 * 384
MB_H = MB_U + 48 * 128
MB_O = MB_H + 64 * 128
MB_S = MB_O + 192 * 128
WS_USED = MB_S + 8 * 384
NONCE_LDS = 163840 - 16
HTOUCH = True
BARSTAMP = False
P3STAMP = False
POSTAT = 0
SPIN = None
ROT = 1
TOUCH1 = 0
TOUCHW = 1
SEQ1 = [0,1,2,3,0,1,2,3,0]
SEQC = [0,1,2,3,0,1,2,3,0]
SEQO = [[5,10,0,15,5],[5,10,0,15,5]]
OUTSC = 'sc1'
CODEWARM = True
OOB = 0x40000000
SLOT = 40960
UNIT = 20480
QSCALE = (18 ** -0.5) * 1.4426950408889634
LOG2E = 1.4426950408889634
SC = "sc1"
NAME = "concat_heads__softmax_full_mha__ssm_conv_s5__prompt_kernel"
WS = "s[36:39]"; DBG = "s[52:55]"

def mf(d, x, y, c=None):
    return f"v_mfma_f32_32x32x16_bf16 {vr(d,16)}, {vr(x,4)}, {vr(y,4)}, {vr(d,16) if c is None else c}"
def rd128(dst, adr, off): return f"ds_read_b128 {vr(dst,4)}, v{adr} offset:{off}"
def rdtr(dst, adr, off): return f"ds_read_b64_tr_b16 {vr(dst,2)}, v{adr} offset:{off}"

def endk(a, idx=11):
    if asm.STAMP: a("s_waitcnt vmcnt(0)")
    stamp(a, idx)
    if SPIN:
        k, mult, base = SPIN
        l1 = a.lab("L_sp"); l2 = a.lab("L_spd")
        a(f"""s_cmp_lg_u32 s3, 0
        s_cbranch_scc1 {l2}
        s_sub_u32 s60, s{70+2*k}, s94
        s_cmp_eq_u32 s{70+2*k}, 0
        s_cselect_b32 s60, 0, s60
        s_max_i32 s60, s60, 0
        s_mul_i32 s60, s60, {mult}
        s_add_u32 s60, s60, {base}
        {l1}:
        s_memrealtime s[98:99]
        s_waitcnt lgkmcnt(0)
        s_sub_u32 s61, s98, s94
        s_cmp_lt_i32 s61, s60
        s_cbranch_scc1 {l1}
        {l2}:""")
    elif asm.DBGSTAMP: asm.stamp_dbg(a)
    else: stamp_flush(a, 32)
    a("s_endpgm")

def poll(a, soff, nlanes, wide=False, tmp="s[66:67]", cnt="s68"):
    lp = a.lab("L_poll"); dn = a.lab("L_polld")
    a(f"""v_lshlrev_b32 v26, {3 if wide else 2}, v1
    s_mov_b32 {cnt}, 0x40000
    s_mov_b32 exec_lo, {hex(((1 << nlanes) - 1) & 0xffffffff)}
    s_mov_b32 exec_hi, {hex(((1 << nlanes) - 1) >> 32)}
    {lp}:
    buffer_load_dword{"x2 v[24:25]" if wide else " v24"}, v26, {WS}, {soff} offen sc1
    s_waitcnt vmcnt(0)
    v_cmp_eq_u32 vcc, s94, v24""")
    if wide: a(f"v_cmp_eq_u32 {tmp}, s94, v25\ns_and_b64 vcc, vcc, {tmp}")
    a(f"""s_cmp_eq_u64 vcc, exec
    s_cbranch_scc1 {dn}
    s_sleep 2
    s_sub_u32 {cnt}, {cnt}, 1
    s_cmp_lg_u32 {cnt}, 0
    s_cbranch_scc1 {lp}
    {dn}:
    s_mov_b64 exec, -1""")

def post(a, voff, soff):
    a(f"v_mov_b32 v27, s94\nbuffer_store_dword v27, v{voff}, {WS}, {soff} offen sc1")

def post_strided(a, n, soff):
    a(f"""v_lshlrev_b32 v26, 7, v1
    v_cmp_gt_u32 vcc, {n}, v1
    v_mov_b32 v27, {OOB}
    s_nop 0
    v_cndmask_b32 v26, v27, v26, vcc""")
    post(a, 26, soff)

def issue(a, slot, va, vb, sa, sb, sc="", part=None):
    lst = []
    for n in range(4):
        lst.append(f"s_add_u32 m0, s56, {slot*SLOT + n*1024}\ns_nop 0\nbuffer_load_dwordx4 v{va+n}, s[40:43], {sa} offen {sc} lds")
    for n in range(6):
        lst.append(f"s_add_u32 m0, s57, {slot*SLOT + n*1024}\ns_nop 0\nbuffer_load_dwordx4 v{vb+n}, s[44:47], {sb} offen lds")
    if part: lst = lst[part[0]:part[1]]
    for x in lst: a(x)

class LQ:
    def __init__(self, a): self.a = a; self.q = []
    def rd(self, x, tag): self.a(x[0]); self.q.append((tag, x[1]))
    def mm(self, m, tag):
        pos = [k for k, e in enumerate(self.q) if e[0] == tag and e[1] in m[1]]
        if pos:
            k = max(pos); self.a(f"s_waitcnt lgkmcnt({min(15, len(self.q)-1-k)})"); del self.q[:k+1]
        self.a(m[0])

def compute_loop(a, adr, nadr, reads, mfmas, seq):
    n = len(seq)
    packed = sum(x << (2*k) for k, x in enumerate(seq[1:]))
    a(f"s_mov_b32 s60, 0\ns_mov_b32 s61, {seq[0]}\ns_mov_b32 s64, {packed}")
    L = LQ(a)
    for st in range(2):
        for r in reads(st, st): L.rd(r, st)
    loop = a.lab("L_gl"); last = a.lab("L_gl_last")
    a(f"{loop}:")
    def interleave(ms, buf, nb):
        rs = reads(nb, nb); k = 0
        for m in ms:
            L.mm(m, buf)
            for x in rs[k:k+2]: L.rd(x, nb)
            k += 2
        for x in rs[k:]: L.rd(x, nb)
    interleave(mfmas(0), 0, 2)
    interleave(mfmas(1), 1, 3)
    a(f"s_cmp_eq_u32 s60, {n-1}\ns_cbranch_scc1 {last}")
    qsave = list(L.q)
    ms = mfmas(2)
    L.mm(ms[0], 2)
    a(f"""s_and_b32 s65, s64, 3
    s_lshr_b32 s64, s64, 2
    s_sub_u32 s62, s65, s61
    s_mul_i32 s62, s62, {SLOT}
    s_mov_b32 s61, s65""")
    L.mm(ms[1], 2)
    a("s_waitcnt lgkmcnt(0)\ns_barrier"); del L.q[:]
    for k in range(nadr): a(f"v_add_u32 v{adr+k}, s62, v{adr+k}")
    interleave(ms[2:], 2, 0)
    interleave(mfmas(3), 3, 1)
    a(f"s_add_u32 s60, s60, 1\ns_branch {loop}")
    a(f"{last}:")
    L.q[:] = qsave
    for m in ms: L.mm(m, 2)
    for m in mfmas(3): L.mm(m, 3)
    a("s_nop 15\ns_nop 3")

def chunk_seq(a, n, advance, reads, mfmas, per, hook=None, fill=None):
    L = LQ(a)
    fill = list(fill or [])
    def allreads(i): return [(x, 4*(i & 1) + st) for st in range(4) for x in reads(st, 4*(i & 1) + st)]
    for x, t in allreads(0): L.rd(x, t)
    for i in range(n):
        ms = [(m, 4*(i & 1) + st) for st in range(4) for m in mfmas(4*(i & 1) + st, i == 0 and st == 0)]
        rs = []
        pre = 2 if i > 0 else 6
        for m, t in ms[:pre]: L.mm(m, t)
        if i + 1 < n:
            if hook: hook(i)
            a("s_waitcnt lgkmcnt(0)\ns_barrier"); del L.q[:]
            advance(i + 1)
            rs = allreads(i + 1)
        p = per if i > 0 else -(-len(rs) // (len(ms) - pre))
        k = 0
        for m, t in ms[pre:]:
            for x, tt in rs[k:k+p]: L.rd(x, tt)
            k += p
            if fill: a(fill.pop(0))
            L.mm(m, t)
        for x, tt in rs[k:]: L.rd(x, tt)
    for x in fill: a(x)
    a("s_nop 15\ns_nop 3")

def adr_kc(a, dst, sbase):
    a(f"v_lshlrev_b32 v30, 7, v2\nv_add_u32 v30, {sbase}, v30")
    for s in range(4):
        a(f"v_or_b32 v31, {2*s}, v3\nv_xor_b32 v31, v31, v7\nv_lshl_add_u32 v{dst+s}, v31, 4, v30")

def voff_kc(a, dst, n, rowstep):
    a(f"""v_lshrrev_b32 v31, 4, v1
    v_and_b32 v29, 7, v1
    v_xor_b32 v31, v31, v29
    v_lshl_add_u32 v{dst}, v31, 4, v30
    v_xor_b32 v31, 64, v{dst}""")
    for i in range(1, n):
        a(f"v_add_u32 v{dst+i}, {i*rowstep*1152}, v{31 if i & 1 else dst}")

S0 = 32; OA = 96; P0 = 128; QM = 144; QL = 152; KM = 156; KL = 164; VB = 168
VAK = 10; VAL = 11; VAV = 12
GROUPS = [1, 1, 6]
ACC = 32; FR0 = 128; ADR = 8; EPI = 16
ADR3 = 184; ACC3 = 208; ACCO = 160; DV = 190; F3 = 32
def frag(buf, k): return FR0 + 20 * buf + 4 * k
def acc(mt, c): return ACC + 16 * (3 * mt + c)

def gen(a):
    name = NAME
    khead(a, name)
    a("""s_load_dwordx16 s[4:19], s[0:1], 0
    s_load_dwordx8 s[20:27], s[0:1], 64
    s_load_dwordx4 s[28:31], s[0:1], 96
    s_load_dwordx2 s[32:33], s[0:1], 112
    v_lshrrev_b32 v1, 6, v0
    s_cmp_ge_u32 s2, 256
    v_readfirstlane_b32 s3, v1
    s_cbranch_scc1 L_exit""")
    stamp_init(a); stamp(a, 0)
    a("""s_and_b32 s34, s2, 7
    s_lshr_b32 s35, s2, 3
    s_and_b32 s58, s2, 1
    s_lshl_b32 s58, s58, 3
    s_and_b32 s59, s35, 7
    s_add_u32 s58, s58, s59
    s_lshr_b32 s59, s34, 1
    s_lshl_b32 s59, s59, 2
    s_lshr_b32 s60, s2, 6
    s_add_u32 s59, s59, s60
    v_and_b32 v1, 63, v0
    s_cmp_ge_u32 s3, 4
    s_cbranch_scc0 L_comp""")
    a("""s_sub_u32 s69, s3, 4
    s_lshl_b32 s56, s69, 12
    s_mul_i32 s57, s69, 6144
    s_add_u32 s57, s57, 16384
    s_lshl_b32 s60, s58, 2
    s_add_u32 s60, s60, s69
    s_mul_i32 s60, s60, 36864
""")
    if ROT:
        a("""    s_and_b32 s63, s35, 7
    s_lshr_b32 s61, s35, 3
    s_lshl_b32 s61, s61, 1
    s_add_u32 s63, s63, s61
    s_add_u32 s63, s63, s34
    s_mul_i32 s61, s63, 57
    s_lshr_b32 s61, s61, 9
    s_mul_i32 s61, s61, 9
    s_sub_u32 s63, s63, s61
""")
    else:
        a("s_mov_b32 s63, 0")
    a("""    s_cmp_ge_u32 s59, 9
    s_cbranch_scc1 L_ldu""")
    a("v_lshrrev_b32 v30, 3, v1\nv_mul_u32_u24 v30, 1152, v30")
    voff_kc(a, 10, 4, 8)
    for n in range(3):
        a(f"""v_add_u32 v28, {64*n}, v1
        v_mul_u32_u24 v30, 2731, v28
        v_lshrrev_b32 v30, 16, v30
        v_mul_u32_u24 v29, 24, v30
        v_sub_u32 v29, v28, v29
        v_bfe_u32 v31, v30, 1, 1
        v_lshlrev_b32 v31, 2, v31
        v_xor_b32 v29, v29, v31
        v_mul_u32_u24 v30, 3456, v30
        v_lshl_add_u32 v{14+n}, v29, 4, v30
        v_add_u32 v{17+n}, {8*3456}, v{14+n}""")
    a(f"""s_mul_i32 s61, s69, {16*3456}
    s_mul_i32 s62, s59, 384
    s_add_u32 s61, s61, s62
    s_mov_b32 s62, {64*3456}
    s_waitcnt lgkmcnt(0)""")
    srd(a, 40, 4, 2048*1152)
    srd(a, 44, 6, 576*3456)
    a("s_branch L_ldgo\nL_ldu:")
    a("""v_bfe_u32 v30, v1, 3, 1
    v_lshlrev_b32 v30, 4, v30
    v_bfe_u32 v31, v1, 5, 1
    v_lshl_add_u32 v30, v31, 3, v30
    v_bfe_u32 v31, v1, 4, 1
    v_add_u32 v30, v30, v31
    v_mul_u32_u24 v30, 1152, v30""")
    voff_kc(a, 10, 4, 2)
    a("v_lshrrev_b32 v30, 3, v1\nv_mul_u32_u24 v30, 1152, v30")
    voff_kc(a, 14, 6, 8)
    a(f"""s_sub_u32 s61, s59, 9
    s_lshl_b32 s61, s61, 1
    s_and_b32 s62, s69, 1
    s_add_u32 s61, s61, s62
    s_mul_i32 s61, s61, {48*1152}
    s_mov_b32 s62, 128
    s_waitcnt lgkmcnt(0)
    s_cmp_ge_u32 s69, 2
    s_cselect_b32 s44, s18, s16
    s_cselect_b32 s45, s19, s17
    s_mov_b32 s46, {576*1152}
    s_mov_b32 s47, 0x00020000""")
    srd(a, 40, 10, 2048*1152)
    a("L_ldgo:")
    srd(a, 36, 32, WS_USED)
    srd(a, 52, 30, 256)
    a("s_cmp_ge_u32 s59, 15\ns_cbranch_scc1 L_h_p1d")
    stamp(a, 1)
    def p1_soff():
        a("""s_lshl_b32 s48, s63, 7
        s_add_u32 s48, s48, s60
        s_mul_i32 s49, s63, s62
        s_add_u32 s49, s49, s61
        s_add_u32 s63, s63, 1
        s_cmp_eq_u32 s63, 9
        s_cselect_b32 s63, 0, s63""")
    p1_soff(); issue(a, 0, 10, 14, "s48", "s49")
    p1_soff(); issue(a, 1, 10, 14, "s48", "s49", part=(0, 4))
    a("s_waitcnt vmcnt(4)")
    stamp(a, 2)
    a("s_barrier")
    issue(a, 1, 10, 14, "s48", "s49", part=(4, 10))
    issued = 2
    for i in range(9):
        if i > 0:
            a(f"s_waitcnt vmcnt({10*(issued-1-i)})\ns_barrier")
        lim = min(9, i + 4) if i > 0 else 3
        while issued < lim:
            p1_soff(); issue(a, issued % 4, 10, 14, "s48", "s49"); issued += 1
    a("L_h_p1d:")
    gen_scan_pre(a, 0)
    a(f"""v_and_b32 v28, 31, v1
    v_mul_u32_u24 v29, 9, v28
    v_lshrrev_b32 v29, 2, v29
    v_lshrrev_b32 v30, 5, v1
    v_lshl_add_u32 v29, v30, 1, v29
    v_mul_u32_u24 v29, 43, v29
    v_lshrrev_b32 v29, 10, v29
    v_mul_u32_u24 v28, 384, v28
    v_lshl_add_u32 v28, v30, 6, v28
    s_mul_i32 s60, s59, 43
    s_lshr_b32 s60, s60, 7
    s_mul_i32 s61, s60, 3
    s_sub_u32 s61, s59, s61
    v_cmp_eq_u32 vcc, s61, v29
    v_mov_b32 v30, {OOB}
    s_lshl_b32 s48, s60, 7
    v_cndmask_b32 v9, v30, v28, vcc
    s_lshl_b32 s61, s58, 2
    s_add_u32 s48, s48, s61
    s_add_u32 s48, s48, {MB_QKV}
    s_sub_u32 s49, s59, 9
    s_lshl_b32 s49, s49, 10
    s_add_u32 s49, s49, s61
    s_add_u32 s49, s49, {MB_U}
""")
    head_geom(a)
    a(f"s_mul_i32 s50, s40, 384\ns_add_u32 s50, s50, {MB_QKV}")
    a(f"""v_and_b32 v2, 31, v0
    v_bfe_u32 v3, v0, 5, 1
    v_lshlrev_b32 v10, 15, v3
    v_lshl_add_u32 v10, v2, 4, v10
    v_lshlrev_b32 v11, 4, v1
    s_lshl_b32 s60, s43, 15
    s_lshl_b32 s64, s69, 10
    s_add_u32 s60, s60, s64
    s_add_u32 s60, s60, {KF_OFF}
    s_add_u32 s61, s44, s64
    s_add_u32 s61, s61, {KF_OFF}
    s_mul_i32 s62, s40, 288
    s_add_u32 s62, s62, {VF_OFF}
    s_and_b32 s65, s69, 1
    s_lshl_b32 s65, s65, 10
    s_lshl_b32 s66, s69, 11
    s_lshl_b32 s67, s69, 9
    v_lshlrev_b32 v12, 3, v1
    v_add_u32 v12, s67, v12""")
    for e in range(3):
        a(f"""s_lshr_b32 s51, {"s64" if e < 2 else "s65"}, 4
        v_add_u32 v28, s51, v1
        v_add_u32 v28, {256*e}, v28
        v_mul_u32_u24 v29, 3450, v28
        v_lshrrev_b32 v29, 16, v29
        v_mul_u32_u24 v30, 19, v29
        v_sub_u32 v30, v28, v30
        v_cmp_gt_u32 vcc, 18, v30
        v_cmp_gt_u32 s[{40+2*e}:{41+2*e}], 32, v29
        v_mul_u32_u24 v29, {VG}, v29
        v_lshl_add_u32 v{14+e}, v30, 4, v29
        s_and_b64 s[{40+2*e}:{41+2*e}], s[{40+2*e}:{41+2*e}], vcc""")
    a("""v_lshrrev_b32 v30, 3, v1
    v_lshlrev_b32 v30, 12, v30
    v_bfe_u32 v31, v1, 4, 1
    v_lshlrev_b32 v31, 2, v31
    v_and_b32 v29, 7, v1
    v_xor_b32 v31, v31, v29
    v_lshl_add_u32 v228, v31, 4, v30""")
    for n in range(1, 4): a(f"v_add_u32 v{228+n}, {n*8*4096}, v228")
    a("v_lshrrev_b32 v30, 3, v1\nv_mul_u32_u24 v30, 1152, v30")
    voff_kc(a, 232, 6, 8)
    for n in range(4): a(f"v_lshlrev_b32 v{238+n}, 4, v1\nv_add_u32 v{238+n}, {n*GS}, v{238+n}")
    a("s_and_b32 s51, s69, 1\ns_mul_i32 s51, s51, 384")
    for n in range(6):
        a(f"""v_add_u32 v28, s51, v1
        v_add_u32 v28, {64*n}, v28
        v_mul_u32_u24 v30, 5462, v28
        v_lshrrev_b32 v30, 16, v30
        v_mul_u32_u24 v29, 12, v30
        v_sub_u32 v29, v28, v29
        v_lshrrev_b32 v28, 4, v30
        v_mul_u32_u24 v28, 18, v28
        v_bfe_u32 v31, v30, 3, 1
        v_lshl_add_u32 v28, v31, 2, v28
        v_bfe_u32 v31, v30, 2, 1
        v_lshl_add_u32 v28, v31, 3, v28
        v_and_b32 v31, 3, v30
        v_add_u32 v28, v28, v31
        v_mul_u32_u24 v28, 1152, v28
        v_lshl_add_u32 v{242+n}, v29, 4, v28
        v_lshrrev_b32 v28, 1, v30
        v_mul_u32_u24 v28, 18, v28
        v_and_b32 v31, 1, v30
        v_add_u32 v28, v28, v31
        v_add_u32 v28, 16, v28
        v_mul_u32_u24 v28, 1152, v28
        v_lshl_add_u32 v{248+n}, v29, 4, v28""")
    a("v_and_b32 v28, 31, v1\nv_lshrrev_b32 v29, 5, v1\nv_lshl_add_u32 v28, v29, 6, v28\nv_lshlrev_b32 v254, 12, v28\nv_lshlrev_b32 v255, 7, v1")
    gen_scan_pre(a, 1)
    a(f"v_mov_b32 v28, {NONCE_LDS}")
    stamp(a, 3)
    a("""s_barrier
    ds_read_b32 v29, v28
    s_waitcnt lgkmcnt(0)
    v_readfirstlane_b32 s94, v29
    s_cmp_lg_u32 s69, 0
    s_cbranch_scc1 L_h_p2
    s_cmp_ge_u32 s59, 9
    s_cbranch_scc1 L_h_sigu""")
    post(a, 9, "s48")
    a("s_branch L_h_p2\nL_h_sigu:\ns_cmp_ge_u32 s59, 15\ns_cbranch_scc1 L_h_p2")
    post_strided(a, 8, "s49")
    a("L_h_p2:")
    a(f"""s_mul_i32 s48, s69, {2*UNIT}
    v_mul_u32_u24 v28, {UNIT}, v3
    v_mul_u32_u24 v29, 304, v2
    v_add3_u32 v28, v28, v29, s48
    v_mov_b32 v20, 0x3f803f80
    v_mov_b32 v21, 0x3f803f80
    v_mov_b32 v22, 0x3f803f80
    v_mov_b32 v23, 0x3f803f80
    ds_write_b128 v28, v[20:23] offset:{10240+288}""")
    a("s_cmp_lg_u32 s69, 0\ns_cbranch_scc1 L_h_kv")
    poll(a, "s50", 48, True, "s[46:47]")
    a("L_h_kv:")
    stamp(a, 4)
    a("s_barrier")
    def unit(u):
        a(f"s_add_u32 s48, s61, {u*4096}\nbuffer_load_dwordx2 {vr(32+2*u,2)}, v11, {WS}, s48 offen {SC}")
        for e in range(2):
            a(f"s_add_u32 m0, s66, {u*UNIT + e*1024}\ns_add_u32 s48, s60, {u*4096 + e*512}\nbuffer_load_dwordx4 v10, {WS}, s48 offen {SC} lds")
        a(f"s_add_u32 s48, s62, {u*32*VG}")
        for e in range(3):
            a(f"s_add_u32 m0, {'s64' if e < 2 else 's65'}, {u*UNIT + 10240 + e*4096}\ns_mov_b64 exec, s[{40+2*e}:{41+2*e}]\nbuffer_load_dwordx4 v{14+e}, {WS}, s48 offen {SC} lds")
        a("s_mov_b64 exec, -1")
    def unit_fin(us):
        for u in us:
            lo = u*UNIT + 8192
            if lo > 65535 - 2048:
                a(f"v_add_u32 v13, {lo}, v12\nds_write_b64 v13, {vr(32+2*u,2)}")
            else:
                a(f"ds_write_b64 v12, {vr(32+2*u,2)} offset:{lo}")
        a("s_waitcnt lgkmcnt(0)")
    g0, g1, g2 = GROUPS
    for u in range(g0 + g1): unit(u)
    a(f"s_waitcnt vmcnt({6*g1})"); unit_fin(range(g0))
    stamp(a, 5)
    a("s_barrier")
    for u in range(g0 + g1, 8): unit(u)
    a(f"s_waitcnt vmcnt({6*g2})"); unit_fin(range(g0, g0 + g1)); a("s_barrier")
    a("s_waitcnt vmcnt(0)"); unit_fin(range(g0 + g1, 8))
    gen_scan_load(a)
    a("L_h_scanl:\ns_barrier")
    stamp(a, 6)
    a("s_cmp_ge_u32 s95, 576\ns_cbranch_scc1 L_h_scand\ns_setprio 3")
    gen_scan(a)
    a("L_h_scand:\ns_setprio 3")
    stamp(a, 7)
    gen_prefetch(a)
    a(f"""s_lshl_b32 s60, s35, 2
    s_add_u32 s60, s60, s69
    s_cmp_eq_u32 s60, 127
    s_cbranch_scc0 L_h_noagg
    s_mul_i32 s60, s34, 384
    s_add_u32 s60, s60, {MB_S}""")
    poll(a, "s60", 36, True)
    a(f"s_lshl_b32 s60, s34, 2\ns_add_u32 s60, s60, {MB_H}")
    post_strided(a, 64, "s60")
    a("L_h_noagg:")
    a("s_cmp_ge_u32 s35, 24\ns_cbranch_scc1 L_h_nop3")
    p3_geom(a)
    a(f"""s_lshr_b32 s60, s69, 1
    s_mul_i32 s60, s60, {576*4096}
    s_and_b32 s61, s69, 1
    s_lshl_b32 s62, s61, 17
    s_add_u32 s60, s60, s62
    s_and_b32 s62, s58, 3
    s_lshl_b32 s62, s62, 10
    s_add_u32 s60, s60, s62
    s_lshr_b32 s62, s58, 2
    s_lshl_b32 s62, s62, 7
    s_add_u32 s60, s60, s62
    s_add_u32 s60, s60, {HT_OFF}
    s_lshl_b32 s62, s59, 1
    s_add_u32 s61, s61, s62
    s_mul_i32 s61, s61, {48*1152}
    s_cmp_ge_u32 s69, 2
    s_cselect_b32 s44, s22, s20
    s_cselect_b32 s45, s23, s21
    s_mov_b32 s46, {576*1152}
    s_mov_b32 s47, 0x00020000""")
    srd(a, 40, 32, WS_USED)
    a(f"""s_lshr_b32 s64, s69, 1
    s_mul_i32 s51, s59, 192
    s_mul_i32 s63, s64, {4*72*1152}
    s_add_u32 s63, s63, s51
    s_and_b32 s65, s69, 1
    s_lshl_b32 s62, s65, 17
    s_lshl_b32 s65, s58, 10
    s_add_u32 s62, s62, s65
    s_add_u32 s62, s62, {OF_OFF}
    s_add_u32 s50, s62, {64*GS}
    s_lshl_b32 s65, s64, 20
    s_add_u32 s62, s62, s65
    s_cmp_eq_u32 s64, 0
    s_cselect_b32 s50, s50, {OOB}
    s_cselect_b32 s51, s51, {OOB}
    s_and_b32 s65, s2, 63
    s_lshl_b32 s65, s65, 7
    s_add_u32 s65, s65, {MB_H}""")
    srd(a, 52, 8, 576*1152)
    poll(a, "s65", 8)
    stamp(a, 8)
    if HTOUCH:
        for q in range(3):
            a(f"s_add_u32 s48, s60, {(3+2*q)*64*4096}\nbuffer_load_dword v{20+q}, v254, {WS}, s48 offen {SC}")
    a("s_waitcnt vmcnt(0)\ns_barrier")
    def dmaC(ch, slot):
        for n in range(4):
            a(f"s_add_u32 m0, s56, {slot*SLOT + n*1024}\ns_add_u32 s48, s60, {ch*64*4096}\nbuffer_load_dwordx4 v{228+n}, s[40:43], s48 offen {SC} lds")
        for n in range(6):
            a(f"s_add_u32 m0, s57, {slot*SLOT + n*1024}\ns_add_u32 s49, s61, {ch*128}\nbuffer_load_dwordx4 v{232+n}, s[44:47], s49 offen lds")
    def dmaOA(q):
        for n in range(4):
            a(f"s_add_u32 m0, s56, {SEQO[0][q]*8192 + n*1024}\ns_add_u32 s48, {'s62' if q < 4 else 's50'}, {q*8*GS if q < 4 else 0}\nbuffer_load_dwordx4 v{238+n}, s[40:43], s48 offen {SC} lds")
    def dmaOB(q):
        for n in range(6):
            a(f"s_add_u32 m0, s57, {SEQO[1][q]*8192 + n*1024}\ns_add_u32 s49, {'s63' if q < 4 else 's51'}, {q*72*1152 if q < 4 else 0}\nbuffer_load_dwordx4 v{(242 if q < 4 else 248)+n}, s[52:55], s49 offen lds")
    def bar(vm=None):
        if vm is not None: a(f"s_waitcnt vmcnt({vm})")
        a("s_barrier")
    dmaC(0, 0); dmaC(1, 1); dmaC(2, 2)
    bar(0); dmaC(3, 3)
    bar(); dmaC(4, 0)
    bar(); dmaC(5, 1)
    bar(20); dmaC(6, 2)
    bar(20); dmaC(7, 3)
    bar(20); dmaC(8, 0)
    bar(20); dmaOB(0)
    bar(16); dmaOB(1)
    bar(12)
    stamp(a, 9)
    dmaOA(0); dmaOA(1)
    bar(); dmaOA(2); dmaOB(2)
    bar(14); dmaOA(3); dmaOB(3)
    bar(20); dmaOA(4); dmaOB(4)
    bar(20)
    bar(10)
    bar(0)
    endk(a)
    a("L_h_nop3:\ns_barrier")
    endk(a)
    a("L_comp:")
    a("""v_and_b32 v2, 31, v0
    v_bfe_u32 v3, v0, 5, 1
    v_bfe_u32 v4, v0, 2, 2
    v_bfe_u32 v5, v0, 4, 1
    v_lshlrev_b32 v5, 5, v5
    v_and_b32 v6, 3, v0
    v_lshl_add_u32 v5, v6, 3, v5
    v_bfe_u32 v6, v0, 3, 1
    v_bfe_u32 v7, v0, 1, 3
    s_and_b32 s56, s3, 1
    s_lshr_b32 s57, s3, 1
    s_waitcnt lgkmcnt(0)""")
    srd(a, 36, 32, WS_USED)
    srd(a, 52, 30, 256)
    a(f"""s_cmp_lg_u32 s3, 0
    s_cbranch_scc1 L_c_nn
    s_memrealtime s[60:61]
    s_waitcnt lgkmcnt(0)
    s_or_b32 s60, s60, 1
    s_mov_b64 exec, 1
    v_mov_b32 v20, s60
    v_mov_b32 v21, 0
    v_mov_b32 v22, s60
    buffer_atomic_cmpswap v[20:21], v21, {DBG}, 0 offen sc0 sc1
    s_mov_b64 exec, -1
    L_c_nn:""")
    if TOUCH1:
        a(f"""s_cmp_ge_u32 s59, 15
        s_cbranch_scc1 L_notouch
        s_cmp_ge_u32 s59, 9
        s_cselect_b32 s40, s10, s4
        s_cselect_b32 s41, s11, s5
        s_mov_b32 s42, {2048*1152}
        s_mov_b32 s43, 0x00020000
        s_lshl_b32 s60, s58, 2
        s_lshr_b32 s61, s35, 3
        s_add_u32 s60, s60, s61
        s_mul_i32 s60, s60, 36864
        s_lshl_b32 s61, s3, 8
        s_add_u32 s60, s60, s61
        v_mul_u32_u24 v28, 1152, v2
        v_lshl_add_u32 v28, v3, 7, v28
        v_mov_b32 v18, v28
        s_add_u32 s50, s60, 128
        s_and_b32 s62, s35, 7
        v_cmp_gt_u32 vcc, 24, v2
        v_mov_b32 v30, {OOB}
        s_cmp_ge_u32 s59, 9
        s_cbranch_scc1 L_touchu
        v_mul_u32_u24 v28, 43, v2
        v_lshrrev_b32 v28, 7, v28
        v_mul_u32_u24 v29, 3, v28
        v_sub_u32 v29, v2, v29
        v_lshl_add_u32 v28, v3, 6, v28
        v_mul_u32_u24 v28, 3456, v28
        v_lshl_add_u32 v28, v29, 7, v28
        v_cndmask_b32 v28, v30, v28, vcc
        s_lshl_b32 s60, s3, 7
        s_lshl_b32 s62, s62, 3
        s_add_u32 s60, s60, s62
        s_add_u32 s60, s60, 64
        s_mul_i32 s60, s60, 3456
        s_mul_i32 s62, s59, 384
        s_add_u32 s60, s60, s62""")
        srd(a, 44, 6, 576*3456)
        a(f"""s_branch L_touchb
        L_touchu:
        v_cndmask_b32 v28, v30, v28, vcc
        s_cmp_ge_u32 s62, 4
        s_cselect_b32 s44, s18, s16
        s_cselect_b32 s45, s19, s17
        s_mov_b32 s46, {576*1152}
        s_mov_b32 s47, 0x00020000
        s_and_b32 s62, s62, 3
        s_sub_u32 s60, s59, 9
        s_lshl_b32 s60, s60, 2
        s_add_u32 s60, s60, s62
        s_mul_i32 s60, s60, {24*1152}
        s_add_u32 s60, s60, s61
        s_add_u32 s60, s60, 128
        L_touchb:
        v_mov_b32 v19, v28
        s_mov_b32 s51, s60
        L_notouch:""")
    if CODEWARM:
        a(f"""s_getpc_b64 s[60:61]
        L_pc:
        s_add_u32 s60, s60, {NAME}-L_pc
        s_addc_u32 s61, s61, -1
        s_lshl_b32 s62, s3, 13
        v_lshlrev_b32 v23, 7, v1
        v_add_u32 v23, s62, v23
        v_cmp_gt_u32 vcc, L_exit-{NAME}, v23
        s_and_saveexec_b64 s[62:63], vcc
        s_cbranch_execz L_nowarm
        global_load_dword v17, v23, s[60:61]
        L_nowarm:
        s_mov_b64 exec, -1""")
    a("s_cmp_ge_u32 s59, 15\ns_cbranch_scc1 L_c_p1d")
    a("s_lshl_b32 s66, s56, 13")
    adr_kc(a, ADR, "s66")
    for i in range(96): a(f"v_mov_b32 v{ACC+i}, 0")
    a("s_lshl_b32 s67, s58, 2\ns_lshl_b32 s68, s56, 1\ns_add_u32 s67, s67, s68")
    a("s_cmp_ge_u32 s59, 9\ns_cbranch_scc1 L_cu")
    def adr_w(inrow):
        a(f"v_lshl_add_u32 v30, v3, 3, v4\nv_mul_u32_u24 v30, 384, v30\nv_add_u32 v30, v30, v{inrow}\ns_mul_i32 s66, s57, 3")
        for c in range(3):
            a(f"s_add_u32 s63, s66, {c}\nv_xor_b32 v31, s63, v6\nv_lshl_add_u32 v{ADR+4+c}, v31, 6, v30")
    def reads_w(s, buf):
        return [(rdtr(frag(buf, 2 + c) + 2 * e, ADR + 4 + c, 16384 + (16 * s + 4 * e) * 384), 2 + c) for c in range(3) for e in range(2)]
    def reads_xw(s, buf):
        w = reads_w(s, buf)
        return [(rd128(frag(buf, 0), ADR + s, 0), 0)] + w[:2] + [(rd128(frag(buf, 1), ADR + s, 4096), 1)] + w[2:]
    def p1_end():
        a("s_branch L_c_p1d")
    def touch():
        l = a.lab("L_nt")
        a(f"""s_cmp_lt_u32 s3, {TOUCHW}
        s_cbranch_scc1 {l}
        buffer_load_dword v24, v18, s[40:43], s50 offen
        buffer_load_dword v25, v19, s[44:47], s51 offen
        {l}:""")
    def p1_start():
        stamp(a, 1)
        if TOUCH1 == 2: touch()
        a("s_barrier"); stamp(a, 2)
        if TOUCH1 == 1: touch()
    a("s_cmp_ge_u32 s59, 6\ns_cbranch_scc1 L_cv")
    a("""v_bfe_u32 v28, v0, 4, 1
    v_lshlrev_b32 v28, 5, v28
    v_and_b32 v29, 1, v0
    v_lshl_add_u32 v28, v29, 4, v28
    v_bfe_u32 v29, v0, 1, 1
    v_lshl_add_u32 v28, v29, 3, v28""")
    adr_w(28)
    a(f"v_lshlrev_b32 v{EPI}, 15, v3\nv_lshl_add_u32 v{EPI}, v2, 4, v{EPI}")
    p1_start()
    compute_loop(a, ADR, 7, reads_xw, lambda buf: [(mf(acc(mt, c), frag(buf, 2 + c), frag(buf, mt)), [mt, 2+c]) for c in range(3) for mt in range(2)], SEQ1)
    stamp(a, 3)
    a(f"""s_cmp_lt_u32 s59, 3
    s_cselect_b32 s66, {f2u(QSCALE)}, 1.0
    s_lshl_b32 s68, s59, 1
    s_add_u32 s68, s68, s57
    s_mul_i32 s68, s68, {12*GS}
    s_lshl_b32 s67, s67, 9
    s_add_u32 s68, s68, s67""")
    t = 0
    for c in range(3):
        for m in range(2):
            a(f"s_add_u32 s63, s68, {(4*c+2*m)*GS}")
            for mt in range(2):
                r = acc(mt, c) + 8 * m
                o = FR0 + 4 * (t % 8); t += 1
                for i in range(8): a(f"v_mul_f32 v{r+i}, s66, v{r+i}")
                for i in range(4): a(f"v_cvt_pk_bf16_f32 v{o+i}, v{r+2*i}, v{r+2*i+1}")
                a(f"buffer_store_dwordx4 {vr(o,4)}, v{EPI}, {WS}, s63 offen offset:{512*mt} {SC}")
    p1_end()
    a("L_cv:")
    adr_w(5)
    a(f"v_mul_u32_u24 v{EPI}, {VG}, v3\nv_lshl_add_u32 v{EPI}, v2, 4, v{EPI}")
    p1_start()
    compute_loop(a, ADR, 7, reads_xw, lambda buf: [(mf(acc(mt, c), frag(buf, mt), frag(buf, 2 + c)), [mt, 2+c]) for c in range(3) for mt in range(2)], SEQ1)
    stamp(a, 3)
    a(f"""s_mul_i32 s68, s67, {4*VG}
    s_sub_u32 s63, s59, 6
    s_lshl_b32 s63, s63, 1
    s_add_u32 s63, s63, s57
    s_mul_i32 s63, s63, 1536
    s_add_u32 s68, s68, s63
    s_add_u32 s68, s68, {VF_OFF}""")
    t = 0
    for mt in range(2):
        for m in range(2):
            a(f"s_add_u32 s63, s68, {(4*mt + 2*m)*VG}")
            for c in range(3):
                r = acc(mt, c) + 8 * m
                o = FR0 + 4 * (t % 8); t += 1
                for i in range(4): a(f"v_cvt_pk_bf16_f32 v{o+i}, v{r+2*i}, v{r+2*i+1}")
                a(f"buffer_store_dwordx4 {vr(o,4)}, v{EPI}, {WS}, s63 offen offset:{512*c} {SC}")
    p1_end()
    a("L_cu:")
    a("s_mul_i32 s66, s57, 12288\ns_add_u32 s66, s66, 16384")
    adr_kc(a, ADR + 4, "s66")
    a(f"v_mul_u32_u24 v{EPI}, 18432, v3\nv_lshl_add_u32 v{EPI}, v2, 4, v{EPI}")
    def reads_u(s, buf):
        return [(rd128(frag(buf, 0), ADR + s, 0), 0), (rd128(frag(buf, 2), ADR + 4 + s, 0), 2), (rd128(frag(buf, 1), ADR + s, 4096), 1),
                (rd128(frag(buf, 3), ADR + 4 + s, 4096), 3), (rd128(frag(buf, 4), ADR + 4 + s, 8192), 4)]
    p1_start()
    compute_loop(a, ADR, 8, reads_u, lambda buf: [(mf(acc(mt, c), frag(buf, mt), frag(buf, 2 + c)), [mt, 2+c]) for c in range(3) for mt in range(2)], SEQ1)
    stamp(a, 3)
    a(f"""s_mul_i32 s68, s67, 73728
    s_mul_i32 s63, s57, 36864
    s_add_u32 s68, s68, s63
    s_sub_u32 s63, s59, 9
    s_mul_i32 s63, s63, 1536
    s_add_u32 s68, s68, s63
    s_add_u32 s68, s68, {UF_OFF}""")
    t = 0
    for mt in range(2):
        for jj in range(2):
            a(f"s_add_u32 s63, s68, {73728*mt + 9216*jj}")
            for c in range(3):
                r = acc(mt, c) + 8 * jj
                o = FR0 + 4 * (t % 8); t += 1
                for i in range(4): a(f"v_cvt_pk_bf16_f32 v{o+i}, v{r+2*i}, v{r+2*i+1}")
                a(f"buffer_store_dwordx4 {vr(o,4)}, v{EPI}, {WS}, s63 offen offset:{512*c} {SC}")
    a("L_c_p1d:")
    stamp(a, 4)
    gen_attn(a)
    gen_p3_comp(a)
    a("L_exit:\ns_endpgm")

def gen_xd_load(a):
    p3_geom(a, 46, 47)
    srd(a, 40, 10, 2048*1152)
    srd(a, 48, 26, 1152)
    a(f"""s_lshr_b32 s66, s46, 2
    s_lshl_b32 s66, s66, 8
    s_lshl_b32 s67, s56, 7
    s_add_u32 s66, s66, s67
    s_lshl_b32 s67, s57, 6
    s_add_u32 s66, s66, s67
    s_and_b32 s67, s46, 3
    s_lshl_b32 s67, s67, 2
    s_add_u32 s66, s66, s67
    v_mul_u32_u24 v28, {2*1152}, v3
    v_lshl_add_u32 v28, v2, 1, v28
    s_mul_i32 s67, s66, 1152
    s_mul_i32 s68, s47, 192
    s_add_u32 s67, s67, s68
    v_lshlrev_b32 v29, 1, v2""")
    for i in range(48): a(f"v_mov_b32 v{ACC3+i}, 0")
    for i in range(4): a(f"v_mov_b32 v{DV+i}, 0")
    for c in range(3):
        a(f"buffer_load_short_d16_hi v{DV+c}, v29, s[48:51], s68 offen offset:{64*c}")
    for r in range(8):
        a(f"s_add_u32 s63, s67, {(32*(r>>2) + ((r&3)>>1) + 16*(r&1))*1152}")
        for c in range(3):
            a(f"buffer_load_short_d16_hi v{ACC3+16*c+r}, v28, s[40:43], s63 offen offset:{64*c}")
    a(f"""s_mul_i32 s52, s66, 4608
    s_mul_i32 s68, s47, 384
    s_add_u32 s52, s52, s68
    s_add_u32 s52, s52, 2304
    s_lshl_b32 s53, s46, 6
    s_lshl_b32 s67, s56, 5
    s_add_u32 s53, s53, s67
    s_lshl_b32 s67, s57, 4
    s_add_u32 s53, s53, s67
    s_mul_i32 s53, s53, 4608
    s_add_u32 s53, s53, s68""")

def head_geom(a):
    a("""s_lshl_b32 s40, s34, 2
    s_lshr_b32 s41, s35, 3
    s_add_u32 s40, s40, s41
    s_and_b32 s95, s35, 7
    s_mul_i32 s42, s40, 9
    s_lshr_b32 s42, s42, 2
    s_and_b32 s45, s40, 3
    s_lshr_b32 s46, s45, 1
    s_add_u32 s43, s42, s46
    s_xor_b32 s44, s46, 1
    s_lshl_b32 s44, s44, 1
    s_add_u32 s44, s44, s42
    s_lshl_b32 s44, s44, 15
    s_lshl_b32 s46, s46, 3
    s_add_u32 s44, s44, s46""")

def p3_geom(a, t=58, c=59):
    a(f"""s_and_b32 s{t}, s34, 3
    s_lshl_b32 s{t}, s{t}, 3
    s_and_b32 s{c}, s35, 7
    s_add_u32 s{t}, s{t}, s{c}
    s_lshr_b32 s{c}, s34, 2
    s_mul_i32 s{c}, s{c}, 3
    s_lshr_b32 s60, s35, 3
    s_add_u32 s{c}, s{c}, s60""")

def gen_attn(a):
    gen_xd_load(a)
    head_geom(a)
    p3_geom(a)
    a(f"""s_lshl_b32 s66, s57, 13
    s_lshl_b32 s62, s57, 5
    v_lshl_add_u32 v30, v3, 3, v4
    v_lshlrev_b32 v29, 7, v30
    v_xor_b32 v31, s62, v5
    v_add_u32 v29, v29, v31
    v_xor_b32 v31, s56, v6
    v_lshl_add_u32 v29, v31, 6, v29
    v_add_u32 v{ADR3+4}, s66, v29
    v_mul_u32_u24 v29, 192, v30
    v_add_u32 v29, v29, v5
    s_mul_i32 s63, s57, 12288
    s_add_u32 s62, s63, {SEQO[1][0]*8192}
    v_add_u32 v5, s62, v29
    s_lshl_b32 s62, s57, 4
    v_xor_b32 v31, s62, v2
    v_lshlrev_b32 v29, 10, v3
    v_lshl_add_u32 v29, v31, 4, v29
    s_lshl_b32 s62, s56, 9
    s_add_u32 s62, s62, s66
    s_add_u32 s62, s62, {SEQO[0][0]*8192}
    v_add_u32 v4, s62, v29
    s_add_u32 s66, s63, 16384""")
    adr_kc(a, ADR3, "s66")
    a(f"""s_mul_i32 s63, s3, 6144
    v_lshlrev_b32 v28, 4, v1
    v_add_u32 v28, {2*SLOT}, v28
    v_add_u32 v6, s63, v28
    s_xor_b32 s63, s3, 2
    s_mul_i32 s63, s63, 6144
    v_add_u32 v7, s63, v28
    s_lshl_b32 s54, s95, 2
    s_add_u32 s54, s54, s3
    s_mul_i32 s54, s54, 768
    s_lshl_b32 s63, s40, 2
    s_add_u32 s54, s54, s63
    s_add_u32 s54, s54, {MB_O}
    s_mul_i32 s55, s58, 6
    s_add_u32 s55, s55, s59
    s_lshl_b32 s55, s55, 7
    s_add_u32 s55, s55, {MB_O}""")
    a(f"""s_lshl_b32 s46, s95, 3
    s_lshl_b32 s47, s3, 1
    s_add_u32 s46, s46, s47
    s_lshl_b32 s47, s46, 9
    s_lshl_b32 s48, s43, 15
    s_add_u32 s48, s48, s47
    s_add_u32 s49, s44, s47
    v_lshlrev_b32 v{VAK}, 4, v1
    v_lshlrev_b32 v13, 15, v3
    v_lshl_add_u32 v13, v2, 4, v13
    v_lshlrev_b32 v14, 30, v3
    v_lshl_add_u32 v14, v2, 4, v14
    v_lshlrev_b32 v{VAL}, 3, v2
    v_add_u32 v{VAL}, 8192, v{VAL}
    v_mov_b32 v8, 0x8000
    v_cmp_gt_u32 vcc, 19, v2
    v_mul_u32_u24 v9, 304, v3
    s_nop 0
    v_cndmask_b32 v8, v8, v2, vcc
    v_cmp_eq_u32 vcc, 28, v2
    s_nop 1
    v_cndmask_b32 v8, v8, 18, vcc
    v_lshl_add_u32 v15, v8, 4, v9
    v_add_u32 v{VAV}, 10240, v15
    v_mul_u32_u24 v8, {2*4608}, v3
    v_lshl_add_u32 v8, v2, 2, v8
    v_mul_u32_u24 v9, {4*4608}, v3
    v_lshl_add_u32 v9, v2, 2, v9""")
    for i in range(32): a(f"v_mov_b32 v{OA+i}, 0")
    for i in range(4): a(f"v_mov_b32 v{P0+12+i}, 0")
    for i in range(4): a(f"v_mov_b32 v{VB+8+4+i}, 0")
    a(f"""s_lshl_b32 s50, s40, 16
    s_add_u32 s50, s50, s47
    s_add_u32 s50, s50, {OF_OFF}
    s_lshr_b32 s51, s40, 2
    s_lshl_b32 s51, s51, 15
    s_add_u32 s51, s51, s47
    s_lshl_b32 s62, s45, 2
    s_add_u32 s51, s51, s62
    s_add_u32 s51, s51, {OF_OFF + 64*GS}
    s_cmp_eq_u32 s45, 3
    s_cselect_b32 s60, 0, -1
    s_cmp_eq_u32 s45, 0
    s_cselect_b32 s61, 0, -1
    s_cmp_eq_u32 s45, 1
    s_cselect_b32 s62, 0, -1
    s_mov_b32 s63, -1
    s_cmp_eq_u32 s45, 2
    s_mov_b32 s64, -1
    s_cselect_b32 s65, 0, -1
    s_setprio 2""")
    a(f"""s_waitcnt vmcnt(27)
    s_cmp_lg_u32 s3, 0
    s_cbranch_scc1 L_c_nn2
    s_mov_b64 exec, 1
    v_cmp_eq_u32 vcc, 0, v20
    v_mov_b32 v21, {NONCE_LDS}
    s_nop 0
    v_cndmask_b32 v20, v20, v22, vcc
    ds_write_b32 v21, v20
    v_readfirstlane_b32 s94, v20
    s_mov_b64 exec, -1
    s_waitcnt lgkmcnt(0)
    L_c_nn2:""")
    stamp(a, 5)
    a("s_barrier")
    a(f"v_mov_b32 v28, {NONCE_LDS}\nds_read_b32 v29, v28\ns_waitcnt lgkmcnt(0)\nv_readfirstlane_b32 s94, v29")
    stamp(a, 6)
    a("s_barrier")
    a(f"""buffer_load_dwordx4 {vr(QM,4)}, v13, {WS}, s48 offen {SC}
    buffer_load_dwordx4 {vr(QM+4,4)}, v13, {WS}, s48 offen offset:512 {SC}
    buffer_load_dwordx2 {vr(QL,2)}, v{VAK}, {WS}, s49 offen {SC}
    s_waitcnt vmcnt(3)""")
    for c in range(3):
        for r in range(0, 8, 2): a(f"v_pk_mul_f32 {vr(ACC3+16*c+r,2)}, {vr(ACC3+16*c+r,2)}, {vr(DV+(c&2),2)} op_sel:[0,{c&1}] op_sel_hi:[1,{c&1}]")
    a(f"""s_waitcnt vmcnt(0)
    v_and_b32 v{QL}, s60, v{QL}
    v_and_b32 v{QL+1}, s61, v{QL+1}
    v_cndmask_b32 v{QM}, 0, v{QM}, s[62:63]
    v_cndmask_b32 v{QM+4}, 0, v{QM+4}, s[62:63]
    v_cndmask_b32 v{QM+3}, 0, v{QM+3}, s[64:65]
    v_cndmask_b32 v{QM+7}, 0, v{QM+7}, s[64:65]
    s_mov_b32 s60, 0
    s_barrier""")
    stamp(a, 7)
    def toff(t, per): return (t // 8) * UNIT + (t % 8) * per
    def rdK(t, buf): return f"ds_read_b128 {vr(KM+4*buf,4)}, v{VAK} offset:{toff(t,1024)}"
    def rdL(t, buf): return f"ds_read_b64 {vr(KL+2*buf,2)}, v{VAL} offset:{toff(t,256)}"
    def rdV(t, m, buf): return f"ds_read_b128 {vr(VB+8*buf+4*m,4)}, v{VAV} offset:{toff(t,1216)+608*m}"
    def qk_a(buf): return mf(S0+32*buf, KM+4*buf, QM, "0")
    def qk_b(buf): return mf(S0+32*buf+16, KM+4*buf, QM+4, "0")
    def qk_l(buf): return f"v_mfma_f32_32x32x4_2b_bf16 {vr(S0+32*buf,32)}, {vr(KL+2*buf,2)}, {vr(QL,2)}, {vr(S0+32*buf,32)}"
    def pv(q, m, buf): return mf(OA+16*q, VB+8*buf+4*m, P0+8*q+4*m)
    def H(k, buf):
        b = S0 + 32*buf + 4*k
        for i in range(4): a(f"v_exp_f32 v{b+i}, v{b+i}")
        a(f"v_cvt_pk_bf16_f32 v{P0+2*k}, v{b}, v{b+1}\nv_cvt_pk_bf16_f32 v{P0+2*k+1}, v{b+2}, v{b+3}")
    a(rdK(0, 0)); a(rdL(0, 0)); a(rdK(1, 1)); a(rdL(1, 1)); a(rdV(0, 0, 0)); a(rdV(0, 1, 0))
    a("s_waitcnt lgkmcnt(4)")
    a(qk_a(0)); a(qk_b(0)); a("s_nop 9"); a(qk_l(0)); a("s_nop 15\ns_nop 3")
    a(".p2align 6\nL_at_loop:")
    barmask = (1 << (GROUPS[0]-1)) | (1 << (GROUPS[0]+GROUPS[1]-1)) | (1 << 6)
    for j in range(8):
        b = j & 1; nb = b ^ 1
        H(0, b); a(pv(1, 1, nb)); a("s_waitcnt lgkmcnt(0)")
        H(1, b); a(qk_a(nb)); a(rdV(j+1, 0, nb))
        H(2, b); a(qk_b(nb)); a(rdV(j+1, 1, nb))
        H(3, b); a(pv(0, 0, b)); a(rdK(j+2, b))
        H(4, b); a(qk_l(nb))
        H(5, b)
        H(6, b); a(pv(0, 1, b)); a(rdL(j+2, b))
        H(7, b); a(pv(1, 0, b))
        if j == 4: a(f"s_bitcmp1_b32 {barmask}, s60")
        if j == 5:
            if asm.STAMP and BARSTAMP:
                a("""s_cbranch_scc0 L_at_nobar
                s_memtime s[98:99]
                s_barrier
                s_memtime s[100:101]
                s_waitcnt lgkmcnt(0)
                s_mov_b32 s73, s77
                s_mov_b32 s75, s79
                s_mov_b32 s77, s81
                s_mov_b32 s79, s83
                s_mov_b32 s81, s98
                s_mov_b32 s83, s100
                L_at_nobar:""")
            else:
                a("s_cbranch_scc0 L_at_nobar\ns_barrier\nL_at_nobar:")
        if j == 6: a("s_add_u32 s60, s60, 1")
        if j == 7:
            a("s_cmp_lt_u32 s60, 8")
            for r in (VAK, VAL, VAV): a(f"v_add_u32 v{r}, {UNIT}, v{r}")
            a("s_cbranch_scc1 L_at_loop")
    a(pv(1, 1, 1))
    a("s_mov_b32 s61, 0")
    stamp(a, 8)
    a("L_at_fin:")
    a("s_nop 15\ns_nop 3\nv_cmp_eq_u32 vcc, 0, v3\ns_nop 1")
    for q in range(2):
        a(f"v_cndmask_b32 v{16+q}, v{OA+16*q+12}, v{OA+16*q+10}, vcc")
    a("s_cmp_lg_u32 s61, 0\ns_cbranch_scc1 L_at_store")
    a("v_min_f32 v18, v16, v17\nv_add_f32 v20, v16, v17\nv_mov_b32 v19, v20")
    for q in range(2):
        o = OA + 16*q
        for i in range(10):
            a(f"v_add_f32 v19, abs(v{o+i}), v19")
    a(f"""v_cmp_le_f32 vcc, {hex(f2u(2.0**-60))}, v18
    s_mov_b64 s[62:63], vcc
    v_cmp_ge_f32 vcc, {hex(f2u(2.0**60))}, v20
    s_and_b64 s[62:63], s[62:63], vcc
    v_cmp_ge_f32 vcc, {hex(f2u(2.0**120))}, v19
    s_and_b64 s[62:63], s[62:63], vcc
    s_cmp_eq_u64 s[62:63], exec
    s_cbranch_scc0 L_at_slow""")
    a("L_at_store:")
    for q in range(2):
        o = OA + 16*q
        a(f"v_rcp_f32 v{16+q}, v{16+q}\ns_nop 0")
        for i in range(10): a(f"v_mul_f32 v{o+i}, v{o+i}, v{16+q}")
        for i in range(5): a(f"v_cvt_pk_bf16_f32 v{P0+8*q+i}, v{o+2*i}, v{o+2*i+1}")
        a(f"buffer_store_dwordx4 {vr(P0+8*q,4)}, v13, {WS}, s50 offen offset:{512*q} {SC}")
        a(f"buffer_store_dword v{P0+8*q+4}, v14, {WS}, s51 offen offset:{512*q} {SC}")
    a("s_setprio 0\ns_branch L_c_p3")
    a("L_at_slow:")
    a(f"""v_lshlrev_b32 v21, 4, v2
    v_mul_u32_u24 v22, {VG}, v3
    v_add_u32 v22, v22, v21
    v_cmp_gt_u32 vcc, 18, v2
    v_mov_b32 v23, {OOB}
    v_mov_b32 v24, 0x3f803f80
    v_cndmask_b32 v22, v23, v22, vcc
    v_cndmask_b32 v24, v24, 0, vcc""")
    def reset():
        a(f"""s_lshl_b32 s62, s43, 15
        s_add_u32 s62, s62, {KF_OFF}
        s_add_u32 s63, s44, {KF_OFF}
        s_mul_i32 s64, s40, 288
        s_add_u32 s64, s64, {VF_OFF}
        s_mov_b32 s60, 0""")
    def qk_plain():
        a(f"""buffer_load_dwordx4 {vr(KM,4)}, v13, {WS}, s62 offen {SC}
        buffer_load_dwordx2 {vr(KL,2)}, v21, {WS}, s63 offen {SC}
        s_waitcnt vmcnt(0)""")
        a(qk_a(0)); a(qk_b(0)); a("s_nop 9"); a(qk_l(0)); a("s_nop 15\ns_nop 3")
    def adv(lab):
        a(f"""s_add_u32 s62, s62, 512
        s_add_u32 s63, s63, 512
        s_add_u32 s64, s64, {4*VG}
        s_add_u32 s60, s60, 1
        s_cmp_lt_u32 s60, 64
        s_cbranch_scc1 {lab}""")
    reset()
    a("v_mov_b32 v18, 0xff800000\nv_mov_b32 v19, 0xff800000\nL_at_slowa:")
    qk_plain()
    for q in range(2):
        for i in range(0, 16, 2):
            a(f"v_max3_f32 v{18+q}, v{S0+16*q+i}, v{S0+16*q+i+1}, v{18+q}")
    adv("L_at_slowa")
    a("""v_xor_b32 v20, 32, v1
    v_lshlrev_b32 v20, 2, v20
    ds_bpermute_b32 v16, v20, v18
    ds_bpermute_b32 v17, v20, v19
    s_waitcnt lgkmcnt(0)
    v_max_f32 v18, v18, v16
    v_max_f32 v19, v19, v17""")
    reset()
    for i in range(32): a(f"v_mov_b32 v{OA+i}, 0")
    a("L_at_slowb:")
    a(f"""buffer_load_dwordx4 {vr(VB,4)}, v22, {WS}, s64 offen {SC}
    s_add_u32 s65, s64, {2*VG}
    buffer_load_dwordx4 {vr(VB+4,4)}, v22, {WS}, s65 offen {SC}""")
    qk_plain()
    for i in range(8): a(f"v_or_b32 v{VB+i}, v{VB+i}, v24")
    for q in range(2):
        for i in range(16): a(f"v_sub_f32 v{S0+16*q+i}, v{S0+16*q+i}, v{18+q}")
    for k in range(8): H(k, 0)
    a("s_nop 1")
    for q in range(2):
        for m in range(2): a(pv(q, m, 0))
    a("s_nop 7")
    adv("L_at_slowb")
    a("s_mov_b32 s61, 1\ns_branch L_at_fin")

def gen_p3_comp(a):
    a("""L_c_p3:
    s_cmp_ge_u32 s35, 24
    s_cbranch_scc0 L_c_p3go
    s_waitcnt vmcnt(0)""")
    post_strided(a, 6, "s54")
    endk(a)
    a("L_c_p3go:\ns_barrier")
    stamp(a, 9)
    srd(a, 40, 28, 2048*4608)
    def fr(buf, k): return F3 + 16*buf + 4*k
    def hook(i):
        if P3STAMP == 3: stamp(a, i + 1)
        if i == POSTAT:
            a("s_waitcnt vmcnt(0)")
            post_strided(a, 6, "s54")
        if i == 6:
            a(f"""s_cmp_lg_u32 s3, 0
            s_cbranch_scc1 L_c_nopoll
            v_lshlrev_b32 v26, 2, v2
            buffer_load_dword v23, v26, {WS}, s55 offen sc1
            L_c_nopoll:""")
        if i == 7:
            a("""s_cmp_lg_u32 s3, 0
            s_cbranch_scc1 L_c_oflag
            s_waitcnt vmcnt(0)
            v_cmp_eq_u32 vcc, s94, v23
            s_cmp_eq_u64 vcc, exec
            s_cbranch_scc1 L_c_oflag""")
            poll(a, "s55", 32, cnt="s44")
            a("L_c_oflag:")
    def reads_c(s, buf):
        return [(rdtr(fr(buf, 0), ADR3 + 4, (16*s)*128), 0), (rdtr(fr(buf, 0) + 2, ADR3 + 4, (16*s+4)*128), 0)] + \
               [(rd128(fr(buf, 1 + c), ADR3 + s, 4096*c), 1 + c) for c in range(3)]
    def adv_c(i):
        if P3STAMP == 2: stamp(a, i)
        for k in range(5): a(f"v_add_u32 v{ADR3+k}, {((SEQC[i]-SEQC[i-1])*SLOT) & 0xffffffff}, v{ADR3+k}")
    chunk_seq(a, 9, adv_c, reads_c, lambda buf, first: [(mf(ACC3 + 16*c, fr(buf, 0), fr(buf, 1 + c)), [0, 1+c]) for c in range(3)], 3, hook=hook)
    if P3STAMP == 1: stamp(a, 1)
    def exchange(accb, first):
        for c in range(3):
            for q in range(2):
                a(f"ds_write_b128 v6, {vr(accb+16*c+8+4*q,4)} offset:{(2*c+q)*1024 + (SLOT if first else 0)}")
        a("s_waitcnt lgkmcnt(0)\ns_barrier")
        if P3STAMP == 1: stamp(a, 2 if first else 5)
        for c in range(3):
            for q in range(2):
                a(f"ds_read_b128 {vr(accb+16*c+8+4*q,4)}, v7 offset:{(2*c+q)*1024 + (SLOT if first else 0)}")
        for c in range(3):
            for q in range(2):
                a(f"s_waitcnt lgkmcnt({5-2*c-q})")
                for r in range(4*q, 4*q+4, 2):
                    a(f"v_pk_add_f32 {vr(accb+16*c+r,2)}, {vr(accb+16*c+r,2)}, {vr(accb+16*c+8+r,2)}")
    def stores(accb, sbase, vo, rowoff):
        out = []
        for r in range(8):
            for c in range(3):
                out.append((f"s_add_u32 s63, {sbase}, {rowoff(r)*4608}\n" if c == 0 else "") + f"buffer_store_dword v{accb+16*c+r}, v{vo}, s[40:43], s63 offen offset:{128*c} {OUTSC}")
        return out
    exchange(ACC3, True)
    if P3STAMP == 1: stamp(a, 3)
    a("s_barrier")
    stamp(a, 10)
    def reads_o(s, buf):
        return [(rd128(fr(buf, 0), 4, 2048*s), 0)] + \
               [(rdtr(fr(buf, 1 + c) + 2*e, 5, 16384 + (16*s + 4*e)*192 + 64*c), 1 + c) for c in range(3) for e in range(2)]
    def adv_o(i):
        for k in range(2): a(f"v_add_u32 v{4+k}, {((SEQO[k][i]-SEQO[k][i-1])*8192) & 0xffffffff}, v{4+k}")
    chunk_seq(a, 5, adv_o, reads_o, lambda buf, first: [(mf(ACCO + 16*c, fr(buf, 0), fr(buf, 1 + c), "0" if first else None), [0, 1+c]) for c in range(3)], 4,
              fill=stores(ACC3, "s52", 8, lambda r: 32*(r>>2) + ((r&3)>>1) + 16*(r&1)))
    if P3STAMP == 1: stamp(a, 4)
    exchange(ACCO, False)
    for x in stores(ACCO, "s53", 9, lambda r: 8*(r>>2) + (r&3)): a(x)
    if P3STAMP == 1: stamp(a, 6)
    endk(a)

def gen_prefetch(a):
    a("""s_lshl_b32 s60, s35, 2
    s_add_u32 s60, s60, s69
    s_lshl_b32 s60, s60, 13""")
    srd(a, 44, 8, 576*1152)
    a("buffer_load_dword v5, v255, s[44:47], s60 offen")
    a(f"s_lshr_b32 s61, s34, 2\ns_mul_i32 s61, s61, {288*1152}\ns_add_u32 s62, s61, {288*1152}\ns_add_u32 s61, s61, s60")
    srd(a, 48, 20, "s62")
    a("buffer_load_dword v6, v255, s[48:51], s61 offen")
    srd(a, 44, 22, "s62")
    a("buffer_load_dword v7, v255, s[44:47], s61 offen")
    a(f"s_and_b32 s61, s34, 3\ns_mul_i32 s61, s61, {512*1152}\ns_add_u32 s62, s61, {512*1152}\ns_add_u32 s61, s61, s60")
    srd(a, 48, 10, "s62")
    a("buffer_load_dword v8, v255, s[48:51], s61 offen")

UR = 64; XR = 96; XI = 128
KC = 160
def gen_scan_pre(a, part):
    if part == 0:
        a("""s_lshl_b32 s61, s69, 5
        s_add_u32 s61, s61, s35
        s_mul_i32 s60, s34, 72
        s_add_u32 s60, s60, s61
        s_cmp_ge_u32 s61, 72
        s_cselect_b32 s93x, 576, s60
        s_lshl_b32 s62, s93x, 1
        v_mov_b32 v4, s62""".replace("s93x", "s47"))
        a("s_mov_b32 s63, s47")
        srd(a, 40, 12, 1152); srd(a, 44, 14, 1152); srd(a, 48, 24, 1152)
        a("""buffer_load_ushort v5, v4, s[40:43], 0 offen
        buffer_load_ushort v6, v4, s[44:47], 0 offen
        buffer_load_ushort v7, v4, s[48:51], 0 offen""")
        return
    L, I, CR, CI = KC, KC+2, KC+4, KC+6
    a(f"""s_mov_b32 s95, s63
    s_waitcnt vmcnt(0)
    v_lshlrev_b32 v5, 16, v5
    v_lshlrev_b32 v6, 16, v6
    v_lshlrev_b32 v7, 16, v7
    v_mul_f32 v7, {hex(f2u(LOG2E))}, v7
    v_exp_f32 v7, v7
    s_nop 0
    v_cvt_pk_bf16_f32 v7, v7, v7
    v_and_b32 v7, 0xffff0000, v7
    v_mul_f32 v28, v7, v5
    v_mul_f32 v29, v7, v6
    v_mul_f32 v28, {hex(f2u(LOG2E))}, v28
    v_exp_f32 v28, v28
    v_mul_f32 v29, 0.15915494309189535, v29
    v_fract_f32 v29, v29
    v_cos_f32 v30, v29
    v_sin_f32 v31, v29
    s_nop 0
    v_mul_f32 v{L}, v28, v30
    v_mul_f32 v{I}, v28, v31
    v_add_f32 v30, -1.0, v{L}
    v_mul_f32 v28, v5, v5
    v_fma_f32 v28, v6, v6, v28
    v_rcp_f32 v28, v28
    v_mul_f32 v{CR}, v30, v5
    v_fma_f32 v{CR}, v{I}, v6, v{CR}
    v_mul_f32 v{CI}, v{I}, v5
    v_fma_f32 v{CI}, -v30, v6, v{CI}
    v_add_f32 v28, v28, v28
    v_mul_f32 v{CR}, v{CR}, v28
    v_mul_f32 v{CI}, v{CI}, v28
    v_sub_f32 v{I}, 0, v{I}
    v_mov_b32 v{L+1}, v{L}
    v_mov_b32 v{I+1}, v{I}
    v_mov_b32 v{CR+1}, v{CR}
    v_mov_b32 v{CI+1}, v{CI}""")
    def csq(dr, di, sr_, si):
        a(f"""v_mul_f32 v28, v{si}, v{si}
        v_mul_f32 v{di}, v{sr_}, v{si}
        v_fma_f32 v{dr}, v{sr_}, v{sr_}, -v28
        v_add_f32 v{di}, v{di}, v{di}""")
    csq(KC+8, KC+9, L, I)
    for _ in range(3): csq(KC+8, KC+9, KC+8, KC+9)
    for k in range(6): csq(KC+10+2*k, KC+11+2*k, KC+8+2*k, KC+9+2*k)
    a(f"""v_lshlrev_b32 v{KC+22}, 2, v1
    s_mov_b32 s51, 73728
    v_mul_lo_u32 v8, v1, s51""")

def gen_scan_load(a):
    a(f"""s_cmp_ge_u32 s95, 576
    s_cbranch_scc1 L_h_scanl
    s_mul_i32 s61, s95, 683
    s_lshr_b32 s61, s61, 16
    s_lshl_b32 s61, s61, 3
    s_add_u32 s61, s61, s34
    s_lshl_b32 s61, s61, 7
    s_add_u32 s61, s61, {MB_U}""")
    poll(a, "s61", 16)
    a(f"s_lshl_b32 s61, s95, 4\ns_add_u32 s61, s61, {UF_OFF}")
    for q in range(8):
        a(f"s_add_u32 s62, s61, {9216*q}\nbuffer_load_dwordx4 {vr(UR+4*q,4)}, v8, {WS}, s62 offen {SC}")

def gen_scan(a):
    L, I, CR, CI, P16, AD = KC, KC+2, KC+4, KC+6, KC+8, KC+22
    a("s_waitcnt vmcnt(0)")
    stamp(a, 10)
    def pk(d, x, y, z=None, neg=""):
        if z is None: a(f"v_pk_mul_f32 {vr(d,2)}, {vr(x,2)}, {vr(y,2)} {neg}")
        else: a(f"v_pk_fma_f32 {vr(d,2)}, {vr(x,2)}, {vr(y,2)}, {vr(z,2)} {neg}")
    NEG0 = "neg_lo:[1,0,0] neg_hi:[1,0,0]"
    for D in range(16):
        a(f"""v_lshlrev_b32 v24, 16, v{UR+D}
        v_and_b32 v25, 0xffff0000, v{UR+D}
        v_lshlrev_b32 v26, 16, v{UR+16+D}
        v_and_b32 v27, 0xffff0000, v{UR+16+D}""")
        pk(XR+2*D, CR, 24)
        pk(XI+2*D, CR, 26, None, "neg_lo:[1,0] neg_hi:[1,0]")
        pk(XR+2*D, CI, 26, XR+2*D, NEG0)
        pk(XI+2*D, CI, 24, XI+2*D, NEG0)
    def step(er, ei, nr, ni, D):
        pk(nr, L, er, XR+2*D)
        pk(ni, L, ei, XI+2*D)
        pk(nr, I, ei, nr, NEG0)
        pk(ni, I, er, ni)
    cur = (XR, XI)
    for D in range(1, 16):
        nx = (24, 26) if D & 1 else (28, 30)
        step(cur[0], cur[1], nx[0], nx[1], D); cur = nx
    def cmac(dr, di, pr, pi, xr, xi, ar, ai):
        a(f"""v_fma_f32 v{dr}, v{pr}, v{xr}, v{ar}
        v_fma_f32 v{di}, v{pr}, v{xi}, v{ai}
        v_fma_f32 v{dr}, -v{pi}, v{xi}, v{dr}
        v_fma_f32 v{di}, v{pi}, v{xr}, v{di}""")
    cmac(28, 29, P16, P16+1, 24, 26, 25, 27)
    for k in range(6):
        d = 1 << k
        a(f"""ds_bpermute_b32 v30, v{AD}, v28 offset:{256-4*d}
        ds_bpermute_b32 v31, v{AD}, v29 offset:{256-4*d}
        s_mov_b32 exec_lo, {hex((~((1 << d) - 1)) & 0xffffffff)}
        s_waitcnt lgkmcnt(0)""")
        cmac(28, 29, KC+10+2*k, KC+11+2*k, 30, 31, 28, 29)
        a("s_mov_b32 exec_lo, -1")
    a(f"""ds_bpermute_b32 v22, v{AD}, v28 offset:252
    ds_bpermute_b32 v30, v{AD}, v29 offset:252
    s_waitcnt lgkmcnt(0)
    v_mov_b32 v28, v22
    s_mov_b64 exec, 1
    v_mov_b32 v28, 0
    v_mov_b32 v30, 0
    s_mov_b64 exec, -1""")
    cmac(29, 31, P16, P16+1, 28, 30, 24, 26)
    cur = (28, 30)
    for D in range(16):
        step(cur[0], cur[1], XR+2*D, XI+2*D, D); cur = (XR+2*D, XI+2*D)
        a(f"v_cvt_pk_bf16_f32 v{UR+D}, v{XR+2*D}, v{XR+2*D+1}\nv_cvt_pk_bf16_f32 v{UR+16+D}, v{XI+2*D}, v{XI+2*D+1}")
    a(f"""s_lshl_b32 s61, s95, 12
    s_add_u32 s61, s61, {HT_OFF}
    s_add_u32 s62, s61, {576*4096}""")
    for q in range(4): a(f"buffer_store_dwordx4 {vr(UR+4*q,4)}, v11, {WS}, s61 offen offset:{1024*q} {SC}")
    for q in range(4): a(f"buffer_store_dwordx4 {vr(UR+16+4*q,4)}, v11, {WS}, s62 offen offset:{1024*q} {SC}")
    a(f"""s_mul_i32 s61, s34, {384 - 288}
    s_lshl_b32 s62, s95, 2
    s_add_u32 s61, s61, s62
    s_add_u32 s61, s61, {MB_S}
    s_waitcnt vmcnt(0)""")
    post_strided(a, 1, "s61")
```

```python
from asm import *
import asm

GS = 32768
QF_OFF = 0
KF_OFF = 72 * GS
VF_OFF = 144 * GS
VG = 9216
OF_OFF = VF_OFF + 256 * VG
UF_OFF = OF_OFF + 72 * GS
HT_OFF = UF_OFF + 64 * 73728
MB_QKV = HT_OFF + 2 * 576 * 4096
MB_U = MB_QKV + 32 * 384
MB_H = MB_U + 6 * 32 * 128
MB_O = MB_H + 64 * 128
MB_S = MB_O + 192 * 128
WS_USED = MB_S + 8 * 384
FLB = 163840 - 64
HTOUCH = True
KVAT = 16
P1STAMP = 0
LOOK = 5
MAP2 = 1
XMASK = None
FIRST = 2
POSTQ = 12
EPN = 1
KV16 = 2
KV17 = 2
KV18 = 2
TRIES = 3
USH = 1
SLP = 8
SCSTAMP = 0
FLAGAT = 6
XFILL = 1
SET0 = 50
SETN = 36
BARSTAMP = False
P3STAMP = False
POSTAT = 0
SPIN = None
ROT = 1
TOUCH1 = 0
TOUCHW = 1
S1 = 32768
SEQA = [(k + 2) % 5 for k in range(9)]
SEQU = [(k + 11) % 5 for k in range(9)]
SEQC = [0,1,2,3,0,1,2,3,0]
SEQO = [[5,10,0,15,5],[5,10,0,15,5]]
OUTSC = 'sc1'
CODEWARM = True
OOB = 0x40000000
SLOT = 40960
UNIT = 20480
QSCALE = (18 ** -0.5) * 1.4426950408889634
LOG2E = 1.4426950408889634
SC = "sc1"
NAME = "concat_heads__softmax_full_mha__ssm_conv_s5__prompt_kernel"
WS = "s[36:39]"; DBG = "s[52:55]"

def mf(d, x, y, c=None):
    return f"v_mfma_f32_32x32x16_bf16 {vr(d,16)}, {vr(x,4)}, {vr(y,4)}, {vr(d,16) if c is None else c}"
def rd128(dst, adr, off): return f"ds_read_b128 {vr(dst,4)}, v{adr} offset:{off}"
def rdtr(dst, adr, off): return f"ds_read_b64_tr_b16 {vr(dst,2)}, v{adr} offset:{off}"

def endk(a, idx=11):
    if asm.STAMP: a("s_waitcnt vmcnt(0)")
    stamp(a, idx)
    if SPIN:
        k, mult, base = SPIN
        l1 = a.lab("L_sp"); l2 = a.lab("L_spd")
        a(f"""s_cmp_lg_u32 s3, 0
        s_cbranch_scc1 {l2}
        s_sub_u32 s60, s{70+2*k}, s94
        s_cmp_eq_u32 s{70+2*k}, 0
        s_cselect_b32 s60, 0, s60
        s_max_i32 s60, s60, 0
        s_mul_i32 s60, s60, {mult}
        s_add_u32 s60, s60, {base}
        {l1}:
        s_memrealtime s[98:99]
        s_waitcnt lgkmcnt(0)
        s_sub_u32 s61, s98, s94
        s_cmp_lt_i32 s61, s60
        s_cbranch_scc1 {l1}
        {l2}:""")
    elif asm.DBGSTAMP: asm.stamp_dbg(a)
    else: stamp_flush(a, 32)
    a("s_endpgm")


def poll(a, soff, nlanes, wide=False, tmp="s[66:67]", cnt="s68", t=24, tries=0x40000, slp=2):
    lp = a.lab("L_poll"); dn = a.lab("L_polld")
    a(f"""v_lshlrev_b32 v{t+2}, {3 if wide else 2}, v1
    s_mov_b32 {cnt}, {tries}
    s_mov_b32 exec_lo, {hex(((1 << nlanes) - 1) & 0xffffffff)}
    s_mov_b32 exec_hi, {hex(((1 << nlanes) - 1) >> 32)}
    {lp}:
    buffer_load_dword{f"x2 v[{t}:{t+1}]" if wide else f" v{t}"}, v{t+2}, {WS}, {soff} offen sc1
    s_waitcnt vmcnt(0)
    v_cmp_eq_u32 vcc, s94, v{t}""")
    if wide: a(f"v_cmp_eq_u32 {tmp}, s94, v{t+1}\ns_and_b64 vcc, vcc, {tmp}")
    a(f"""s_cmp_eq_u64 vcc, exec
    s_cbranch_scc1 {dn}
    s_sleep {slp}
    s_sub_u32 {cnt}, {cnt}, 1
    s_cmp_lg_u32 {cnt}, 0
    s_cbranch_scc1 {lp}
    {dn}:
    s_mov_b64 exec, -1""")

def lds_wait(a, word, val, t):
    lp = a.lab("L_lw"); dn = a.lab("L_lwd")
    a(f"""v_mov_b32 v{t}, {FLB + 4*word}
    {lp}:
    ds_read_b32 v{t+1}, v{t}
    s_waitcnt lgkmcnt(0)
    v_readfirstlane_b32 s68, v{t+1}
    s_cmp_ge_u32 s68, {val}
    s_cbranch_scc1 {dn}
    s_sleep 4
    s_branch {lp}
    {dn}:""")
def lds_inc(a, word, t):
    a(f"""s_mov_b64 exec, 1
    v_mov_b32 v{t}, {FLB + 4*word}
    v_mov_b32 v{t+1}, 1
    ds_add_u32 v{t}, v{t+1}
    s_mov_b64 exec, -1""")

def nonce_req(a):
    a("s_load_dword s94, s[30:31], 0")
def nonce_fin(a, t=24, cnt="s68"):
    lp = a.lab("L_non"); dn = a.lab("L_nond")
    a(f"""s_cmp_lg_u32 s94, 0
    s_cbranch_scc1 {dn}
    s_mov_b32 {cnt}, 0x40000
    v_mov_b32 v{t+2}, 0
    {lp}:
    global_load_dword v{t}, v{t+2}, s[30:31] sc1
    s_waitcnt vmcnt(0)
    v_readfirstlane_b32 s94, v{t}
    s_sub_u32 {cnt}, {cnt}, 1
    s_cmp_eq_u32 {cnt}, 0
    s_cbranch_scc1 {dn}
    s_sleep 4
    s_cmp_eq_u32 s94, 0
    s_cbranch_scc1 {lp}
    {dn}:""")

def post_strided(a, n, soff, t=24, sh=7):
    a(f"""v_lshlrev_b32 v{t+2}, {sh}, v1
    v_mov_b32 v{t+3}, s94
    s_mov_b32 exec_lo, {hex(((1 << n) - 1) & 0xffffffff)}
    s_mov_b32 exec_hi, {hex(((1 << n) - 1) >> 32)}
    buffer_store_dword v{t+3}, v{t+2}, {WS}, {soff} offen sc1
    s_mov_b64 exec, -1""")

class LQ:
    def __init__(self, a): self.a = a; self.q = []
    def rd(self, x, tag): self.a(x[0]); self.q.append((tag, x[1]))
    def mm(self, m, tag):
        pos = [k for k, e in enumerate(self.q) if e[0] == tag and e[1] in m[1]]
        if pos:
            k = max(pos); self.a(f"s_waitcnt lgkmcnt({min(15, len(self.q)-1-k)})"); del self.q[:k+1]
        self.a(m[0])

def compute_loop(a, adr, nadr, reads, mfmas, seq, per, npre, pre=None, post=None, tail=()):
    n = len(seq)
    packed = sum(x << (3*k) for k, x in enumerate(seq[1:]))
    a(f"s_mov_b32 s60, 0\ns_mov_b32 s61, {seq[0]}\ns_mov_b32 s64, {packed}")
    L = LQ(a)
    for st in range(2):
        for r in reads(st, st): L.rd(r, st)
    loop = a.lab("L_gl"); last = a.lab("L_gl_last")
    a(f"{loop}:")
    def interleave(ms, buf, nb):
        rs = reads(nb, nb); k = 0
        for m in ms:
            L.mm(m, buf)
            for x in rs[k:k+per]: L.rd(x, nb)
            k += per
        for x in rs[k:]: L.rd(x, nb)
    interleave(mfmas(0), 0, 2)
    interleave(mfmas(1), 1, 3)
    a(f"s_cmp_eq_u32 s60, {n-1}\ns_cbranch_scc1 {last}")
    qsave = list(L.q)
    ms = mfmas(2)
    L.mm(ms[0], 2)
    a(f"""s_and_b32 s65, s64, 7
    s_lshr_b32 s64, s64, 3
    s_sub_u32 s62, s65, s61
    s_lshl_b32 s62, s62, 15
    s_mov_b32 s61, s65""")
    for m in ms[1:npre]: L.mm(m, 2)
    if pre: pre()
    a("s_waitcnt lgkmcnt(0)\ns_barrier"); del L.q[:]
    for k in range(nadr): a(f"v_add_u32 v{adr+k}, s62, v{adr+k}")
    interleave(ms[npre:], 2, 0)
    if post: post()
    interleave(mfmas(3), 3, 1)
    a(f"s_add_u32 s60, s60, 1\ns_branch {loop}")
    a(f"{last}:")
    L.q[:] = qsave
    for m in ms: L.mm(m, 2)
    a("s_waitcnt lgkmcnt(0)\ns_barrier")
    tail = list(tail)
    for m in mfmas(3):
        a(m[0])
        for x in tail[:2]: a(x[0])
        del tail[:2]

def step_seq(a, adr, nadr, reads, mfmas, seq, fill, pre):
    n = len(seq)
    L = LQ(a)
    L.q = [(st, x[1]) for st in range(2) for x in reads(st, st)]
    for i in range(n):
        fl = fill(i); per = -(-len(fl) // len(mfmas(0, False)) // 4) + (1 if len(fl) % 12 else 0)
        for st in range(4):
            ms = mfmas(st, i == 0 and st == 0)
            last = i == n - 1 and st >= 2
            rs = [] if last else reads((st + 2) & 3, (st + 2) & 3)
            for k, m in enumerate(ms):
                L.mm(m, st)
                if st == 2 and k == 0 and i < n - 1:
                    pre(i)
                    a("s_waitcnt lgkmcnt(0)\ns_barrier"); del L.q[:]
                    for r in range(nadr): a(f"v_add_u32 v{adr+r}, {((seq[i+1]-seq[i])*S1) & 0xffffffff}, v{adr+r}")
                for x in rs[2*k:2*k+2]: L.rd(x, (st + 2) & 3)
                for x in fl[:per]: a.l.append(x)
                del fl[:per]
            if i == n - 1 and st == 2:
                a("s_waitcnt lgkmcnt(0)\ns_barrier"); del L.q[:]
        assert not fl

def chunk_seq(a, n, advance, reads, mfmas, per, hook=None, fill=None):
    L = LQ(a)
    fill = list(fill or [])
    def allreads(i): return [(x, 4*(i & 1) + st) for st in range(4) for x in reads(st, 4*(i & 1) + st)]
    for x, t in allreads(0): L.rd(x, t)
    for i in range(n):
        ms = [(m, 4*(i & 1) + st) for st in range(4) for m in mfmas(4*(i & 1) + st, i == 0 and st == 0)]
        rs = []
        pre = 2 if i > 0 else 6
        for m, t in ms[:pre]: L.mm(m, t)
        if i + 1 < n:
            if hook: hook(i)
            a("s_waitcnt lgkmcnt(0)\ns_barrier"); del L.q[:]
            advance(i + 1)
            rs = allreads(i + 1)
        p = per if i > 0 else -(-len(rs) // (len(ms) - pre))
        k = 0
        for m, t in ms[pre:]:
            for x, tt in rs[k:k+p]: L.rd(x, tt)
            k += p
            if fill: a(fill.pop(0))
            L.mm(m, t)
        for x, tt in rs[k:]: L.rd(x, tt)
    for x in fill: a(x)
    a("s_nop 15\ns_nop 3")

def adr_kc(a, dst, sbase):
    a(f"v_lshlrev_b32 v30, 7, v2\nv_add_u32 v30, {sbase}, v30")
    for s in range(4):
        a(f"v_or_b32 v31, {2*s}, v3\nv_xor_b32 v31, v31, v27\nv_lshl_add_u32 v{dst+s}, v31, 4, v30")

def voff_kc(a, dst, n, rowstep, flip=None):
    a(f"""v_lshrrev_b32 v31, 4, v1
    v_and_b32 v29, 7, v1
    v_xor_b32 v31, v31, v29
    v_lshl_add_u32 v{dst}, v31, 4, v30""")
    if flip: a(f"v_xor_b32 v{dst}, {flip}, v{dst}")
    a(f"v_xor_b32 v31, 64, v{dst}")
    for i in range(1, n):
        a(f"v_add_u32 v{dst+i}, {i*rowstep*1152}, v{31 if i & 1 else dst}")

S0 = 32; OA = 96; P0 = 128; QM = 144; QL = 152; KM = 156; KL = 164; VB = 168
VAK = 10; VAL = 11; VAV = 12
ACC = 32; ACCU = 96; FR0 = 192; AX = 156; AW = 160; AU = 162; EPQ = 170; EPU = 171; FLG = 172; NON = 176
ADR3 = 184; ACC3 = 208; ACCO = 160; XF = 192; F3 = 32
def frag(buf, k): return FR0 + 16 * buf + 4 * k

def gen(a):
    khead(a, NAME)
    a("""s_load_dwordx16 s[4:19], s[0:1], 0
    s_load_dwordx8 s[20:27], s[0:1], 64
    s_load_dwordx4 s[28:31], s[0:1], 96
    s_load_dwordx2 s[32:33], s[0:1], 112
    v_lshrrev_b32 v1, 6, v0
    s_cmp_ge_u32 s2, 256
    v_readfirstlane_b32 s3, v1
    s_cbranch_scc1 L_exit""")
    stamp_init(a); stamp(a, 0)
    a("""s_and_b32 s34, s2, 7
    s_lshr_b32 s35, s2, 3
""")
    if MAP2:
        a("""s_and_b32 s58, s34, 3
        s_lshl_b32 s58, s58, 2
        s_and_b32 s59, s35, 3
        s_add_u32 s58, s58, s59
        s_lshr_b32 s60, s34, 2
        s_lshr_b32 s61, s35, 2
        s_mul_i32 s59, s60, 7
        s_add_u32 s59, s59, s61
        s_mul_i32 s96, s60, 6
        s_add_u32 s96, s96, s61
        s_sub_u32 s96, s96, 2
        s_cmp_lt_u32 s61, 7
        s_cselect_b32 s97, 1, 0
        s_cmp_ge_u32 s61, 2
        s_cselect_b32 s60, 2, 0
        s_or_b32 s97, s97, s60
        s_and_b32 s63, s35, 3
        s_lshl_b32 s63, s63, 1
        s_add_u32 s63, s63, s61""")
    else:
        a("""    s_and_b32 s58, s2, 1
    s_lshl_b32 s58, s58, 3
    s_and_b32 s59, s35, 7
    s_add_u32 s58, s58, s59
    s_lshr_b32 s60, s34, 1
    s_lshr_b32 s61, s2, 6
    s_lshl_b32 s59, s60, 2
    s_add_u32 s59, s59, s61
    s_cmp_eq_u32 s60, 3
    s_subb_u32 s59, s59, 0
    s_mul_i32 s96, s60, 3
    s_add_u32 s96, s96, s61
    s_sub_u32 s96, s96, 1
    s_lshr_b32 s60, s60, 1
    s_add_u32 s60, s60, s61
    s_cmp_lt_u32 s60, 4
    s_cselect_b32 s97, 1, 0
    s_cmp_lg_u32 s61, 0
    s_cselect_b32 s60, 2, 0
    s_or_b32 s97, s97, s60
    s_and_b32 s63, s35, 7
        s_lshl_b32 s61, s61, 1
        s_add_u32 s63, s63, s61""")
    a("""    v_and_b32 v1, 63, v0
    s_cmp_ge_u32 s3, 4
    s_cbranch_scc0 L_comp""")
    gen_helper(a)
    gen_comp(a)
    a("L_exit:\ns_endpgm")

def gen_helper(a):
    def hstamp(k):
        if not P1STAMP: stamp(a, k)
    PL = [0,2,4,6,8,9,11,13,15,17]
    HT_ = 40
    LST = 48
    a(f"""s_sub_u32 s69, s3, 4
    s_lshl_b32 s56, s69, 12
    s_add_u32 s57, s56, 16384
    s_lshl_b32 s60, s58, 2
    s_add_u32 s60, s60, s69
    s_mul_i32 s66, s60, 36864
    s_add_u32 s63, s63, s34
    s_mul_i32 s61, s63, 57
    s_lshr_b32 s61, s61, 9
    s_mul_i32 s61, s61, 9
    s_sub_u32 s63, s63, s61
    s_mul_i32 s61, s69, {16*3456}
    s_lshl_b32 s62, s59, 8
    s_add_u32 s61, s61, s62
    s_bitcmp1_b32 s97, 0
    s_cselect_b32 s60, s66, {OOB}
    s_cselect_b32 s61, s61, {OOB}
    s_mov_b32 s62, {64*3456}
    v_lshrrev_b32 v30, 3, v1
    v_mul_u32_u24 v30, 1152, v30""")
    voff_kc(a, 10, 4, 8)
    a("""v_lshrrev_b32 v30, 4, v1
    v_lshlrev_b32 v31, 2, v30
    v_and_b32 v29, 15, v1
    v_xor_b32 v31, v31, v29
    v_mul_u32_u24 v30, 3456, v30
    v_lshl_add_u32 v14, v31, 4, v30""")
    for n in range(1, 4): a(f"v_add_u32 v{14+n}, {n*4*3456}, v14")
    a("s_waitcnt lgkmcnt(0)")
    srd(a, 40, 4, 2048*1152)
    srd(a, 44, 6, 576*3456)
    hstamp(1)
    if XMASK is not None:
        a(f"""s_and_b32 s63, s35, 3
        s_lshr_b32 s68, s35, 2
        s_add_u32 s63, s63, s68
        s_lshr_b32 s68, s34, 2
        s_add_u32 s63, s63, s68
        s_add_u32 s63, s63, s34
        s_lshl_b32 s63, s63, {1 if XMASK in (2, 6) else 0}
        s_and_b32 s63, s63, {XMASK}""")
    def soff(k):
        if XMASK is not None:
            a(f"s_xor_b32 s68, s63, {k}" if k < 8 else "s_mov_b32 s68, 8")
            a("""s_lshl_b32 s48, s68, 7
            s_add_u32 s48, s48, s60
            s_mul_i32 s49, s68, s62
            s_add_u32 s49, s49, s61""")
            return
        a("""s_lshl_b32 s48, s63, 7
        s_add_u32 s48, s48, s60
        s_mul_i32 s49, s63, s62
        s_add_u32 s49, s49, s61
        s_add_u32 s63, s63, 1
        s_cmp_eq_u32 s63, 9
        s_cselect_b32 s63, 0, s63""")
    def step(s, part=None):
        slot = ((s + 2) % 5) * S1
        va, vb, nb = (10, 14, 4) if s < 9 else (18, 22, 3)
        lst = [f"s_add_u32 m0, s56, {slot + n*1024}\ns_nop 0\nbuffer_load_dwordx4 v{va+n}, s[40:43], s48 offen lds" for n in range(4)]
        lst += [f"s_add_u32 m0, s57, {slot + n*1024}\ns_nop 0\nbuffer_load_dwordx4 v{vb+n}, s[44:47], s49 offen lds" for n in range(nb)]
        if s == 9 and (not part or part[0] == 0):
            a(f"""s_cmp_ge_u32 s96, 6
            s_cselect_b32 s44, s18, s16
            s_cselect_b32 s45, s19, s17
            s_cselect_b32 s61, 6, 0
            s_mov_b32 s46, {576*1152}
            s_mov_b32 s47, 0x00020000
            s_sub_u32 s61, s96, s61
            s_lshl_b32 s61, s61, 2
            s_add_u32 s61, s61, s69
            s_mul_i32 s61, s61, {24*1152}
            s_bitcmp1_b32 s97, 1
            s_cselect_b32 s60, s66, {OOB}
            s_cselect_b32 s61, s61, {OOB}
            s_mov_b32 s62, 128
            s_mul_i32 s57, s69, 3072
            s_add_u32 s57, s57, 16384""")
            srd(a, 40, 10, 2048*1152)
        if not part or part[0] == 0: soff(s % 9)
        if part: lst = lst[part[0]:part[1]]
        for x in lst: a(x)
    cnt = lambda s: 8 if s < 9 else 7
    for k in range(FIRST): step(k)
    real = a; a = A(); a.uid = 5000
    gen_scan_pre(a, 0)
    srd(a, 36, 32, WS_USED)
    a("""v_bfe_u32 v30, v1, 3, 1
    v_lshlrev_b32 v30, 4, v30
    v_bfe_u32 v31, v1, 5, 1
    v_lshl_add_u32 v30, v31, 3, v30
    v_bfe_u32 v31, v1, 4, 1
    v_add_u32 v30, v30, v31
    v_mul_u32_u24 v30, 1152, v30""")
    voff_kc(a, 18, 4, 2)
    a("s_and_b32 s65, s69, 1\ns_lshl_b32 s64, s65, 6\nv_lshrrev_b32 v30, 3, v1\nv_mul_u32_u24 v30, 1152, v30")
    voff_kc(a, 22, 3, 8, "s64")
    a(f"""v_and_b32 v2, 31, v0
    v_bfe_u32 v3, v0, 5, 1
    v_lshlrev_b32 v32, 15, v3
    v_lshl_add_u32 v32, v2, 4, v32
    v_lshlrev_b32 v33, 4, v1
    s_lshl_b32 s67, s69, 9
    v_lshlrev_b32 v34, 3, v1
    v_add_u32 v34, s67, v34
    s_mul_i32 s67, s69, {2*UNIT}
    v_mul_u32_u24 v28, {UNIT}, v3
    v_mul_u32_u24 v29, 304, v2
    v_add3_u32 v38, v28, v29, s67
    v_mov_b32 v44, 0x3f803f80
    v_mov_b32 v45, 0x3f803f80
    v_mov_b32 v46, 0x3f803f80
    v_mov_b32 v47, 0x3f803f80""")
    a(f"""v_mul_u32_u24 v28, 9, v2
    v_lshrrev_b32 v28, 2, v28
    v_lshl_add_u32 v28, v3, 1, v28
    v_mul_u32_u24 v29, 384, v2
    v_lshl_add_u32 v29, v3, 6, v29
    v_mov_b32 v30, {OOB}
    v_lshrrev_b32 v31, 4, v28
    v_cmp_eq_u32 vcc, s59, v31
    v_add_u32 v31, 72, v28
    v_lshrrev_b32 v31, 4, v31
    v_cndmask_b32 v25, v30, v29, vcc
    v_cmp_eq_u32 vcc, s59, v31
    v_mul_u32_u24 v31, 18, v2
    v_mul_u32_u24 v28, 17, v3
    v_cndmask_b32 v26, v30, v29, vcc
    v_add_u32 v31, v31, v28
    v_lshrrev_b32 v31, 7, v31
    v_add_u32 v31, 9, v31
    v_cmp_eq_u32 vcc, s59, v31
    s_nop 1
    v_cndmask_b32 v27, v30, v29, vcc""")
    for e in range(3):
        a(f"""s_lshl_b32 s67, {"s69" if e < 2 else "s65"}, 6
        v_add_u32 v28, s67, v1
        v_add_u32 v28, {256*e}, v28
        v_mul_u32_u24 v29, 3450, v28
        v_lshrrev_b32 v29, 16, v29
        v_mul_u32_u24 v30, 19, v29
        v_sub_u32 v30, v28, v30
        v_cmp_gt_u32 vcc, 18, v30
        v_cmp_gt_u32 s[{50+2*e}:{51+2*e}], 32, v29
        v_and_b32 v31, 1, v29
        v_lshrrev_b32 v29, 1, v29
        v_mul_u32_u24 v29, {2*VG}, v29
        v_lshl_add_u32 v29, v31, 4, v29
        v_lshl_add_u32 v{35+e}, v30, 5, v29
        s_and_b64 s[{50+2*e}:{51+2*e}], s[{50+2*e}:{51+2*e}], vcc""")
    a("""v_lshrrev_b32 v30, 3, v1
    v_lshlrev_b32 v30, 12, v30
    v_bfe_u32 v31, v1, 4, 1
    v_lshlrev_b32 v31, 2, v31
    v_and_b32 v29, 7, v1
    v_xor_b32 v31, v31, v29
    v_lshl_add_u32 v228, v31, 4, v30""")
    for n in range(1, 4): a(f"v_add_u32 v{228+n}, {n*8*4096}, v228")
    a("v_lshrrev_b32 v30, 3, v1\nv_mul_u32_u24 v30, 1152, v30")
    voff_kc(a, 232, 6, 8)
    a(f"""s_lshl_b32 s67, s69, 8
    v_xor_b32 v238, s67, v32
    v_xor_b32 v239, 512, v238
    v_bfe_u32 v28, v1, 2, 2
    v_lshl_add_u32 v28, v3, 3, v28
    v_mul_u32_u24 v28, 192, v28
    v_bfe_u32 v29, v1, 4, 1
    v_lshl_add_u32 v28, v29, 5, v28
    v_and_b32 v29, 3, v1
    v_lshl_add_u32 v28, v29, 3, v28
    s_mul_i32 s67, s69, {UNIT}
    v_add_u32 v240, s67, v28
    v_mov_b32 v241, s69""")
    for n in range(3):
        a(f"""v_add_u32 v28, {64*n}, v1
        v_mul_u32_u24 v30, 5462, v28
        v_lshrrev_b32 v30, 16, v30
        v_mul_u32_u24 v29, 12, v30
        v_sub_u32 v29, v28, v29
        v_bfe_u32 v31, v30, 3, 1
        v_lshlrev_b32 v28, 2, v31
        v_bfe_u32 v31, v30, 2, 1
        v_lshl_add_u32 v28, v31, 3, v28
        v_and_b32 v31, 3, v30
        v_add_u32 v28, v28, v31
        v_mul_u32_u24 v28, 1152, v28
        v_lshl_add_u32 v{242+n}, v29, 4, v28
        v_lshrrev_b32 v28, 1, v30
        v_mul_u32_u24 v28, 18, v28
        v_and_b32 v31, 1, v30
        v_add_u32 v28, v28, v31
        v_add_u32 v28, 16, v28
        v_cmp_eq_u32 vcc, 3, v241
        v_mul_u32_u24 v28, 1152, v28
        v_lshl_add_u32 v28, v29, 4, v28
        v_cndmask_b32 v{245+n}, v{242+n}, v28, vcc""")
    a("v_and_b32 v28, 31, v1\nv_lshrrev_b32 v29, 5, v1\nv_lshl_add_u32 v28, v29, 6, v28\nv_lshlrev_b32 v254, 12, v28\nv_lshlrev_b32 v255, 7, v1")
    gen_scan_pre(a, 1)
    a(f"s_mul_i32 s67, s69, 18432\ns_add_u32 s67, s67, {SLOT - 6144}\nv_add_u32 v4, s67, v33")
    for p in range(1, 4):
        a(f"s_xor_b32 s67, s69, {p}\ns_mul_i32 s67, s67, 18432\ns_add_u32 s67, s67, {SLOT + (p-1)*6144}\nv_add_u32 v{4+p}, s67, v33")
    a(f"v_mul_u32_u24 v8, {4*4608}, v3\nv_lshl_add_u32 v8, v2, 2, v8")
    setup = a.l; a = real
    def emit_setup(n):
        k = 0
        while setup and (k < n or "vcc" in setup[0] or any("v_cmp" in x for x in done_tail[-4:])):
            x = setup.pop(0); a.l.append(x); done_tail.append(x); k += 1
    done_tail = []
    emit_setup(SET0)
    issued = FIRST
    while issued < 2:
        step(issued); issued += 1
    for i in range(18):
        a(f"s_waitcnt vmcnt({sum(cnt(k) for k in range(i+1, issued)) + (5*KV16 if i == 17 else 0)})")
        if i == 0: hstamp(2)
        if i == KVAT:
            head_geom(a, 47)
            a(f"""s_mul_i32 s48, s40, 384
            s_add_u32 s48, s48, {MB_QKV}
            s_lshl_b32 s60, s43, 15
            s_lshl_b32 s64, s69, 10
            s_add_u32 s60, s60, s64
            s_add_u32 s60, s60, {KF_OFF}
            s_add_u32 s61, s44, s64
            s_add_u32 s61, s61, {KF_OFF}
            s_mul_i32 s62, s40, 576
            s_add_u32 s62, s62, {VF_OFF}
            s_and_b32 s65, s69, 1
            s_lshl_b32 s65, s65, 10
            s_lshl_b32 s66, s69, 11
            s_cmp_lg_u32 s69, 0
            s_cbranch_scc1 L_h_kv""")
            hstamp(3)
            poll(a, "s48", 48, True, "s[46:47]", t=HT_)
            a("L_h_kv:")
            hstamp(4)
        if P1STAMP == 2 and i in PL: stamp(a, 1 + PL.index(i))
        a("s_barrier")
        if P1STAMP == 1 and i in PL: stamp(a, 1 + PL.index(i))
        if i == 8: nonce_req(a)
        if i == POSTQ:
            a("s_waitcnt lgkmcnt(0)")
            nonce_fin(a, HT_)
            a(f"""s_cmp_lg_u32 s69, 0
            s_cbranch_scc1 L_h_nopq
            s_bitcmp1_b32 s97, 0
            s_cbranch_scc0 L_h_nopq
            s_lshl_b32 s48, s58, 2
            s_add_u32 s48, s48, {MB_QKV}
            v_mov_b32 v{HT_}, s94
            buffer_store_dword v{HT_}, v25, {WS}, s48 offen sc1
            buffer_store_dword v{HT_}, v26, {WS}, s48 offen offset:128 sc1
            buffer_store_dword v{HT_}, v27, {WS}, s48 offen offset:256 sc1
            L_h_nopq:""")
        lim = min(18, i + 5) if i > 0 else 4
        if i < 9: lim = min(lim, 9 + LOOK)
        while issued < lim:
            step(issued); issued += 1
        if i >= 1: emit_setup(SETN if i < 14 else 10000)
        if i == KVAT:
            def unit(u):
                a(f"""s_add_u32 s49, s35, {u}
                s_and_b32 s49, s49, 7
                s_lshl_b32 s63, s49, 12
                s_add_u32 s48, s61, s63
                buffer_load_dwordx2 {vr(LST+2*u,2)}, v33, {WS}, s48 offen {SC}
                s_add_u32 s48, s60, s63""")
                for e in range(2):
                    a(f"s_add_u32 m0, s66, {u*UNIT + e*512}\ns_nop 0\nbuffer_load_dwordx4 v32, {WS}, s48 offen offset:{512*e} {SC} lds")
                a(f"s_mul_i32 s48, s49, {32*VG}\ns_add_u32 s48, s48, s62")
                sk = a.lab("L_sk")
                for e in range(3):
                    if e == 2: a(f"s_cmp_ge_u32 s69, 2\ns_cbranch_scc1 {sk}")
                    a(f"s_add_u32 m0, {'s64' if e < 2 else 's65'}, {u*UNIT + 10240 + e*4096}\ns_mov_b64 exec, s[{50+2*e}:{51+2*e}]\nbuffer_load_dwordx4 v{35+e}, {WS}, s48 offen {SC} lds")
                a(f"{sk}:\ns_mov_b64 exec, -1")
            for u in range(KV16): unit(u)
        if i == 17:
            for u in range(KV16, KV17): unit(u)
    assert KVAT == 16
    def unit_fin(us):
        for u in us:
            lo = u*UNIT + 8192
            if lo > 65535 - 2048:
                a(f"v_add_u32 v28, {lo}, v34\nds_write_b64 v28, {vr(LST+2*u,2)}")
            else:
                a(f"ds_write_b64 v34, {vr(LST+2*u,2)} offset:{lo}")
        a("s_waitcnt lgkmcnt(0)")
    a("s_barrier")
    a(f"ds_write_b128 v38, v[44:47] offset:{10240+288}")
    a("s_setprio 3")
    for u in range(KV17, KV18): unit(u)
    a(f"s_lshl_b32 s49, s69, 2\ns_add_u32 s49, s49, {FLB}\nv_mov_b32 v9, s49\nv_mov_b32 v28, 0\nds_write_b32 v9, v28\nds_write_b32 v9, v28 offset:16")
    a(f"s_waitcnt vmcnt({5*(KV18-2)})"); unit_fin(range(2))
    hstamp(5)
    a("s_barrier")
    for u in range(KV18, 8): unit(u)
    if SCSTAMP: stamp(a, 10)
    a("s_waitcnt vmcnt(0)"); unit_fin(range(2, 8))
    a(f"v_mov_b32 v28, 1\nds_write_b32 v9, v28")
    hstamp(6)
    gen_scan_load(a, False)
    gen_scan(a)
    a("L_h_scand:")
    hstamp(7)
    gen_prefetch(a)
    a(f"""s_lshl_b32 s60, s35, 2
    s_add_u32 s60, s60, s69
    s_cmp_eq_u32 s60, 127
    s_cbranch_scc0 L_h_noagg
    s_mul_i32 s60, s34, 384
    s_add_u32 s60, s60, {MB_S}""")
    poll(a, "s60", 36, True, t=HT_)
    a(f"s_lshl_b32 s60, s34, 2\ns_add_u32 s60, s60, {MB_H}")
    post_strided(a, 64, "s60", t=HT_)
    a("L_h_noagg:")
    a("s_cmp_ge_u32 s35, 24\ns_cbranch_scc1 L_h_nop3")
    p3_geom(a)
    a("s_mul_i32 s57, s69, 6144\ns_add_u32 s57, s57, 16384")
    a(f"""s_lshr_b32 s60, s69, 1
    s_mul_i32 s60, s60, {576*4096}
    s_and_b32 s61, s69, 1
    s_lshl_b32 s62, s61, 17
    s_add_u32 s60, s60, s62
    s_and_b32 s62, s58, 3
    s_lshl_b32 s62, s62, 10
    s_add_u32 s60, s60, s62
    s_lshr_b32 s62, s58, 2
    s_lshl_b32 s62, s62, 7
    s_add_u32 s60, s60, s62
    s_add_u32 s60, s60, {HT_OFF}
    s_lshl_b32 s62, s59, 1
    s_add_u32 s61, s61, s62
    s_mul_i32 s61, s61, {48*1152}
    s_cmp_ge_u32 s69, 2
    s_cselect_b32 s44, s22, s20
    s_cselect_b32 s45, s23, s21
    s_mov_b32 s46, {576*1152}
    s_mov_b32 s47, 0x00020000""")
    srd(a, 40, 32, WS_USED)
    BF = 16; R3 = 124; R2 = 160; R1 = 208
    a(f"""s_mul_i32 s51, s59, 192
    s_mul_i32 s63, s69, {9*18*1152}
    s_add_u32 s63, s63, s51
    s_add_u32 s64, s63, {5*18*1152}
    s_cmp_eq_u32 s69, 3
    s_cselect_b32 s64, s51, s64
    s_mov_b32 s65, {18*1152}
    s_cselect_b32 s65, {144*1152}, s65
    s_mul_i32 s66, s69, {UNIT}
    s_mul_i32 s62, s69, {18*GS}
    s_lshl_b32 s67, s58, 10
    s_add_u32 s62, s62, s67
    s_add_u32 s62, s62, {OF_OFF}
    s_lshl_b32 s50, s58, 6
    s_lshl_b32 s67, s69, 4
    s_add_u32 s50, s50, s67
    s_mul_i32 s50, s50, 4608
    s_mul_i32 s67, s59, 384
    s_add_u32 s50, s50, s67""")
    srd(a, 52, 8, 576*1152)
    lds_wait(a, 5, 4, 10)
    for k0, k1 in ((0, 6), (6, 9)):
        for k in range(k0, k1):
            if k < 5: a(f"s_add_u32 s49, s63, {k*18*1152}")
            elif k == 5: a("s_mov_b32 s49, s64")
            else: a("s_add_u32 s49, s49, s65")
            for n in range(3):
                a(f"s_add_u32 m0, s66, {(k-k0)*3072 + n*1024}\ns_nop 0\nbuffer_load_dwordx4 v{(242 if k < 5 else 245)+n}, s[52:55], s49 offen lds")
        a("s_waitcnt vmcnt(0)")
        for k in range(k0, k1):
            for c in range(3):
                for e in range(2):
                    a(rdtr(BF + 12*k + 4*c + 2*e, 240, (k-k0)*3072 + 4*e*192 + 64*c))
        a("s_waitcnt lgkmcnt(0)")
    srd(a, 52, 28, 2048*4608)
    lds_inc(a, 6, 10)
    a(f"s_and_b32 s51, s2, 63\ns_lshl_b32 s51, s51, 7\ns_add_u32 s51, s51, {MB_H}")
    poll(a, "s51", 8, t=10, slp=4)
    hstamp(8)
    if HTOUCH:
        for q in range(3):
            a(f"s_add_u32 s48, s60, {(3+2*q)*64*4096}\nbuffer_load_dword v14, v254, {WS}, s48 offen {SC}")
    lds_wait(a, 6, 4, 10)
    def dmaC(ch, slot):
        for n in range(4):
            a(f"s_add_u32 m0, s56, {slot*SLOT + n*1024}\ns_add_u32 s48, s60, {ch*64*4096}\nbuffer_load_dwordx4 v{228+n}, s[40:43], s48 offen {SC} lds")
        for n in range(6):
            a(f"s_add_u32 m0, s57, {slot*SLOT + n*1024}\ns_add_u32 s49, s61, {ch*128}\nbuffer_load_dwordx4 v{232+n}, s[44:47], s49 offen lds")
    def loadA():
        hstamp(9)
        for ph in range(2):
            for k in range(9):
                a(f"s_add_u32 s48, s62, {k*2*GS}\nbuffer_load_dwordx4 {vr((R2, R3)[ph] + 4*k, 4)}, v{239-ph}, {WS}, s48 offen {SC}")
    def bar(vm=None):
        if vm is not None: a(f"s_waitcnt vmcnt({vm})")
        a("s_barrier")
    dmaC(0, 0); dmaC(1, 1)
    lds_wait(a, 7, 4, 10)
    dmaC(2, 2)
    bar(0); dmaC(3, 3)
    bar(); dmaC(4, 0)
    bar(); dmaC(5, 1)
    bar(20); dmaC(6, 2)
    bar(20); dmaC(7, 3)
    bar(20); dmaC(8, 0)
    bar(20)
    if FLAGAT == 6: loadA()
    bar(10 + (18 if FLAGAT < 7 else 0))
    if FLAGAT == 7: loadA()
    bar(18 if FLAGAT < 8 else 0)
    if FLAGAT == 8: loadA()
    a("s_setprio 0")
    def wq(p): return [f"ds_write_b128 v4, {vr((R2, R1)[p >> 1] + 16*c + 8*(p & 1) + 4*q, 4)} offset:{p*6144 + (2*c+q)*1024}" for c in range(3) for q in range(2)]
    early = wq(2) + wq(3)
    for ph in range(2):
        for k in range(9):
            a(f"s_waitcnt vmcnt({17 - 9*ph - k})")
            for c in range(3):
                a(mf((R1, R2)[ph] + 16*c, (R2, R3)[ph] + 4*k, BF + 12*k + 4*c, "0" if k == 0 else None))
                if ph == 1 and k >= 4 and early: a(early.pop(0))
    a("s_nop 15\ns_nop 3")
    for x in wq(1): a(x)
    a("s_waitcnt lgkmcnt(0)")
    if not SCSTAMP: hstamp(10)
    a("s_barrier")
    for p in (1, 2, 3):
        for c in range(3):
            for q in range(2):
                a(f"ds_read_b128 {vr(BF + 24*(p-1) + 8*c + 4*q, 4)}, v{4+p} offset:{(2*c+q)*1024}")
    for p in (1, 2, 3):
        a(f"s_waitcnt lgkmcnt({6*(3-p)})")
        for c in range(3):
            for r in range(0, 8, 2):
                a(f"v_pk_add_f32 {vr(R2+16*c+r,2)}, {vr(R2+16*c+r,2)}, {vr(BF+24*(p-1)+8*c+r,2)}")
    for r in range(8):
        a(f"s_add_u32 s63, s50, {(8*(r>>2) + (r&3))*4608}")
        for c in range(3):
            a(f"buffer_store_dword v{R2+16*c+r}, v8, s[52:55], s63 offen offset:{128*c} {OUTSC}")
    a("L_h_nop3:")
    endk(a)

def gen_comp(a):
    a("L_comp:")
    if CODEWARM:
        a(f"""s_getpc_b64 s[64:65]
        L_pc:
        s_add_u32 s64, s64, {NAME}-L_pc
        s_addc_u32 s65, s65, -1
        s_lshl_b32 s66, s3, 13
        v_lshlrev_b32 v23, 7, v1
        v_add_u32 v23, s66, v23
        v_cmp_gt_u32 vcc, L_exit-{NAME}, v23
        s_and_saveexec_b64 s[66:67], vcc
        s_cbranch_execz L_nowarm
        global_load_dword v17, v23, s[64:65]
        L_nowarm:
        s_mov_b64 exec, -1""")
    a("""v_and_b32 v2, 31, v0
    v_bfe_u32 v3, v0, 5, 1
    v_bfe_u32 v24, v0, 2, 2
    v_bfe_u32 v25, v0, 4, 1
    v_lshlrev_b32 v25, 5, v25
    v_and_b32 v26, 3, v0
    v_lshl_add_u32 v25, v26, 3, v25
    v_bfe_u32 v26, v0, 3, 1
    v_bfe_u32 v27, v0, 1, 3
    s_and_b32 s56, s3, 1
    s_lshr_b32 s57, s3, 1
    s_waitcnt lgkmcnt(0)""")
    srd(a, 36, 32, WS_USED)
    a(f"""s_or_b32 s60, s2, s3
    s_cmp_lg_u32 s60, 0
    s_cbranch_scc1 L_c_nn
    s_memrealtime s[60:61]
    s_waitcnt lgkmcnt(0)
    s_or_b32 s60, s60, 1
    s_mov_b64 exec, 1
    v_mov_b32 v{NON}, s60
    v_mov_b32 v{NON+1}, 0
    global_atomic_cmpswap v{NON+1}, {vr(NON,2)}, s[30:31] sc1
    s_mov_b64 exec, -1
    L_c_nn:""")
    a(f"s_lshl_b32 s66, s56, 13\ns_add_u32 s66, s66, {SEQA[0]*S1}")
    adr_kc(a, AX, "s66")
    a(f"""v_and_b32 v28, 32, v25
    v_and_b32 v29, 1, v0
    v_lshl_add_u32 v28, v29, 4, v28
    v_bfe_u32 v29, v0, 1, 1
    v_lshl_add_u32 v28, v29, 3, v28
    s_cmp_ge_u32 s59, 9
    s_cselect_b64 vcc, -1, 0
    v_lshl_add_u32 v30, v3, 3, v24
    v_lshlrev_b32 v30, 8, v30
    v_cndmask_b32 v28, v28, v25, vcc
    v_add_u32 v30, v30, v28
    v_add_u32 v30, {SEQA[0]*S1}, v30
    s_lshl_b32 s66, s57, 1""")
    for c in range(2):
        a(f"s_add_u32 s63, s66, {c}\nv_xor_b32 v31, s63, v24\nv_lshl_add_u32 v{AW+c}, v31, 6, v30")
    a(f"v_mov_b64 {vr(FR0,2)}, 0\nv_mov_b64 {vr(FR0+2,2)}, 0\ns_nop 1")
    for i in range(4): a(mf(ACC+16*i, FR0, FR0, "0"))
    a(f"""s_lshl_b32 s67, s58, 2
    s_lshl_b32 s68, s56, 1
    s_add_u32 s67, s67, s68
    s_lshl_b32 s68, s59, 1
    s_add_u32 s68, s68, s57
    s_cmp_lt_u32 s68, 9
    s_cselect_b32 s21, {f2u(QSCALE)}, 1.0
    s_lshl_b32 s19, s68, 18
    s_lshl_b32 s63, s67, 9
    s_add_u32 s19, s19, s63
    s_mul_i32 s63, s67, {4*VG}
    s_sub_u32 s62, s68, 18
    s_lshl_b32 s62, s62, 11
    s_add_u32 s63, s63, s62
    s_add_u32 s63, s63, {VF_OFF}
    s_cmp_ge_u32 s59, 9
    s_cselect_b32 s19, s63, s19
    s_cselect_b32 s62, {VG}, {GS}
    s_cselect_b32 s22, 4, 15
    s_cselect_b32 s23, 5, 4
    s_movk_i32 s55, 0x200
    s_cselect_b32 s55, 0x400, s55
    v_lshlrev_b32 v{EPQ}, s22, v3
    v_lshlrev_b32 v28, s23, v2
    v_add_u32 v{EPQ}, v28, v{EPQ}
    v_add_u32 v{FLG}, s55, v{EPQ}
    s_cmp_ge_u32 s68, 27
    s_cselect_b32 s19, {OOB}, s19
    s_bitcmp1_b32 s97, 0
    s_cselect_b32 s19, s19, {OOB}
    s_lshl_b32 s20, s58, 2
    s_add_u32 s20, s20, s3
    s_mul_i32 s20, s20, 73728
    s_cmp_ge_u32 s96, 6
    s_cselect_b32 s63, {36864 - 6*1536}, 0
    s_add_u32 s20, s20, s63
    s_mul_i32 s63, s96, 1536
    s_add_u32 s20, s20, s63
    s_add_u32 s20, s20, {UF_OFF}
    s_bitcmp1_b32 s97, 1
    s_cselect_b32 s20, s20, {OOB}
    v_mul_u32_u24 v{EPU}, 18432, v3
    v_lshl_add_u32 v{EPU}, v2, 4, v{EPU}""".replace(f"s_cselect_b32 s62, {VG}, {GS}", f"s_mov_b32 s62, {GS}\n    s_cselect_b32 s62, {VG}, s62"))
    a(f"s_lshl_b32 s18, s62, 1\ns_mov_b32 s22, s21\ns_mov_b32 s23, s21")
    a(f"s_lshl_b32 s66, s3, 12\ns_add_u32 s66, s66, {SEQU[0]*S1}")
    adr_kc(a, AU, "s66")
    adr_kc(a, AU + 4, SEQU[0]*S1 + 16384)
    def acc(p, q): return ACC + 16 * (2 * p + q)
    def reads_xw(s, buf):
        w = [(rdtr(frag(buf, 2 + c) + 2 * e, AW + c, 16384 + (16 * s + 4 * e) * 256), 2 + c) for c in range(2) for e in range(2)]
        return [(rd128(frag(buf, 0), AX + s, 0), 0)] + w[:2] + [(rd128(frag(buf, 1), AX + s, 4096), 1)] + w[2:]
    def reads_u(s, buf):
        return [(rd128(frag(buf, 0), AU + s, 0), 0)] + [(rd128(frag(buf, 1 + c), AU + 4 + s, 4096*c), 1 + c) for c in range(3)]
    stamp(a, 1); a("s_barrier"); stamp(a, 2)
    a("s_cmp_ge_u32 s59, 9\ns_cbranch_scc1 L_cv")
    compute_loop(a, AX, 6, reads_xw, lambda buf: [(mf(acc(c, mt), frag(buf, 2 + c), frag(buf, mt)), [mt, 2+c]) for c in range(2) for mt in range(2)], SEQA, 2, 2, tail=reads_u(0, 0) + reads_u(1, 1))
    a("s_branch L_cu\nL_cv:")
    compute_loop(a, AX, 6, reads_xw, lambda buf: [(mf(acc(mt, c), frag(buf, mt), frag(buf, 2 + c)), [mt, 2+c]) for c in range(2) for mt in range(2)], SEQA, 2, 2, tail=reads_u(0, 0) + reads_u(1, 1))
    a("L_cu:")
    stamp(a, 3)
    e = A()
    e("s_nop 12")
    for p in range(2):
        for m in range(2):
            for q in range(2):
                r = acc(p, q) + 8 * m
                for i in range(0, 8, 2): e(f"v_pk_mul_f32 {vr(r+i,2)}, {vr(r+i,2)}, s[22:23]")
                for i in range(4): e(f"v_cvt_pk_bf16_f32 v{r+i}, v{r+2*i}, v{r+2*i+1}")
                e(f"buffer_store_dwordx4 {vr(r,4)}, v{(EPQ, FLG)[q]}, {WS}, s19 offen {SC}")
            e("s_add_u32 s19, s19, s18")
    su = A(); attn_setup(su)
    ql = A()
    ql(f"""buffer_load_dwordx4 {vr(QM,4)}, v13, {WS}, s48 offen {SC}
    buffer_load_dwordx4 {vr(QM+4,4)}, v13, {WS}, s48 offen offset:512 {SC}
    buffer_load_dwordx2 {vr(QL,2)}, v{VAK}, {WS}, s49 offen {SC}""")
    DF = [16, 20, 28]
    df = A()
    df("s_waitcnt vmcnt(0)\nv_and_b32 v175, 1, v179\nv_lshlrev_b32 v175, 4, v175\nv_lshrrev_b32 v179, 1, v179")
    for c in range(3): df(f"v_lshlrev_b32 v{176+c}, v175, v{176+c}")
    for q in range(4):
        df(f"v_cmp_eq_u32 vcc, {q}, v179\ns_nop 1")
        for c in range(3): df(f"v_cndmask_b32 v{DF[c]+q}, 0, v{176+c}, vcc")
    df(f"""s_cmp_ge_u32 s96, 6
    s_cselect_b32 s18, {(64 - 6*4096) & 0xffffffff}, 0
    s_lshl_b32 s63, s96, 12
    s_add_u32 s18, s18, s63
    s_lshl_b32 s63, s58, 2
    s_add_u32 s18, s18, s63
    s_add_u32 s18, s18, {MB_U}
    s_bitcmp1_b32 s97, 1
    s_cselect_b32 s18, s18, {OOB}""")
    ql.l = df.l + ql.l
    ne = len(e.l); ns = len(su.l)
    def fill(i):
        if i < EPN: return e.l[i*ne//EPN:(i+1)*ne//EPN]
        if i < 7: return su.l[(i-EPN)*ns//(7-EPN):(i-EPN+1)*ns//(7-EPN)]
        if i == 7: return list(ql.l)
        return []
    def pre(i):
        if i == POSTQ - 10: a("s_waitcnt vmcnt(0)")
    step_seq(a, AU, 8, reads_u, lambda buf, first: [(mf(ACCU + 16*c, frag(buf, 0), frag(buf, 1 + c), "0" if first else None), [0, 1+c]) for c in range(3)], SEQU, fill, pre)
    stamp(a, 4)
    nonce_req(a)
    a(f"""s_add_u32 s63, s20, 9216
    s_waitcnt vmcnt(0)
    v_and_b32 v{QL}, s4, v{QL}
    v_and_b32 v{QL+1}, s5, v{QL+1}
    v_cndmask_b32 v{QM}, 0, v{QM}, s[6:7]
    v_cndmask_b32 v{QM+4}, 0, v{QM+4}, s[6:7]
    v_cndmask_b32 v{QM+3}, 0, v{QM+3}, s[8:9]
    v_cndmask_b32 v{QM+7}, 0, v{QM+7}, s[8:9]
    s_nop 3""")
    t = 0
    for c in range(3):
        for jj in range(2):
            r = ACCU + 16*c + 8 * jj
            o = FR0 + 4 * (t % 8); t += 1
            for i in range(4): a(f"v_cvt_pk_bf16_f32 v{o+i}, v{r+2*i}, v{r+2*i+1}")
            a(f"buffer_store_dwordx4 {vr(o,4)}, v{EPU}, {WS}, {'s63' if jj else 's20'} offen offset:{512*c} {SC}")
    a(f"v_mov_b64 {vr(P0+12,2)}, 0\nv_mov_b64 {vr(P0+14,2)}, 0\ns_nop 1")
    for i in range(2): a(mf(OA+16*i, P0+12, P0+12, "0"))
    srd(a, 52, 10, 2048*1152)
    for c in range(3): a(f"buffer_load_dwordx4 {vr(XF+4*c,4)}, v189, s[52:55], s16 offen offset:{64*c}")
    stamp(a, 5)
    a("s_waitcnt lgkmcnt(0)")
    nonce_fin(a)
    a(f"""s_mov_b32 s60, 0
    s_setprio 2
    s_nop 0""")
    stamp(a, 6)
    a("s_barrier")
    stamp(a, 7)
    gen_attn(a)
    gen_p3_comp(a)

def head_geom(a, qb=95):
    a(f"""s_lshl_b32 s40, s34, 2
    s_lshr_b32 s41, s35, 3
    s_add_u32 s40, s40, s41
    s_and_b32 s{qb}, s35, 7
    s_mul_i32 s42, s40, 9
    s_lshr_b32 s42, s42, 2
    s_and_b32 s45, s40, 3
    s_lshr_b32 s46, s45, 1
    s_add_u32 s43, s42, s46
    s_xor_b32 s44, s46, 1
    s_lshl_b32 s44, s44, 1
    s_add_u32 s44, s44, s42
    s_lshl_b32 s44, s44, 15
    s_lshl_b32 s46, s46, 3
    s_add_u32 s44, s44, s46""")

def p3_geom(a, t=58, c=59):
    a(f"""s_and_b32 s{t}, s34, 3
    s_lshl_b32 s{t}, s{t}, 3
    s_and_b32 s{c}, s35, 7
    s_add_u32 s{t}, s{t}, s{c}
    s_lshr_b32 s{c}, s34, 2
    s_mul_i32 s{c}, s{c}, 3
    s_lshr_b32 s60, s35, 3
    s_add_u32 s{c}, s{c}, s60""")

def attn_setup(a):
    head_geom(a)
    p3_geom(a, 24, 25)
    a(f"""s_lshr_b32 s66, s24, 2
    s_lshl_b32 s66, s66, 8
    s_lshl_b32 s67, s56, 7
    s_add_u32 s66, s66, s67
    s_lshl_b32 s67, s57, 6
    s_add_u32 s66, s66, s67
    s_and_b32 s67, s24, 3
    s_lshl_b32 s67, s67, 2
    s_add_u32 s66, s66, s67
    s_mul_i32 s16, s66, 1152
    s_mul_i32 s17, s25, 192
    s_add_u32 s16, s16, s17
    s_mul_i32 s12, s66, 4608
    s_mul_i32 s68, s25, 384
    s_add_u32 s12, s12, s68
    s_add_u32 s12, s12, 2304
    s_lshl_b32 s13, s24, 6
    s_lshl_b32 s67, s56, 5
    s_add_u32 s13, s13, s67
    s_lshl_b32 s67, s57, 4
    s_add_u32 s13, s13, s67
    s_mul_i32 s13, s13, 4608
    s_add_u32 s13, s13, s68
    s_lshl_b32 s14, s95, 2
    s_add_u32 s14, s14, s3
    s_mul_i32 s14, s14, 768
    s_lshl_b32 s63, s40, 2
    s_add_u32 s14, s14, s63
    s_add_u32 s14, s14, {MB_O}
    s_mul_i32 s15, s24, 6
    s_add_u32 s15, s15, s25
    s_lshl_b32 s15, s15, 7
    s_add_u32 s15, s15, {MB_O}""")
    a(f"""s_lshl_b32 s66, s57, 13
    s_lshl_b32 s62, s57, 5
    v_lshl_add_u32 v30, v3, 3, v24
    v_lshlrev_b32 v29, 7, v30
    v_xor_b32 v31, s62, v25
    v_add_u32 v29, v29, v31
    v_xor_b32 v31, s56, v26
    v_lshl_add_u32 v29, v31, 6, v29
    v_add_u32 v{ADR3+4}, s66, v29
    v_mul_u32_u24 v29, 192, v30
    v_add_u32 v29, v29, v25
    s_mul_i32 s63, s57, 12288
    s_add_u32 s62, s63, {SEQO[1][0]*8192}
    v_add_u32 v5, s62, v29
    s_lshl_b32 s62, s57, 4
    v_xor_b32 v31, s62, v2
    v_lshlrev_b32 v29, 10, v3
    v_lshl_add_u32 v29, v31, 4, v29
    s_lshl_b32 s62, s56, 9
    s_add_u32 s62, s62, s66
    s_add_u32 s62, s62, {SEQO[0][0]*8192}
    v_add_u32 v4, s62, v29
    s_add_u32 s66, s63, 16384""")
    adr_kc(a, ADR3, "s66")
    a(f"""s_mul_i32 s63, s3, 6144
    v_lshlrev_b32 v28, 4, v1
    v_add_u32 v28, {2*SLOT}, v28
    v_add_u32 v6, s63, v28
    s_xor_b32 s63, s3, 2
    s_mul_i32 s63, s63, 6144
    v_add_u32 v7, s63, v28
    s_lshl_b32 s46, s95, 3
    s_lshl_b32 s47, s3, 1
    s_add_u32 s46, s46, s47
    s_lshl_b32 s47, s46, 9
    s_lshl_b32 s48, s43, 15
    s_add_u32 s48, s48, s47
    s_add_u32 s49, s44, s47
    v_lshlrev_b32 v{VAK}, 4, v1
    v_lshlrev_b32 v13, 15, v3
    v_lshl_add_u32 v13, v2, 4, v13
    v_lshlrev_b32 v14, 30, v3
    v_lshl_add_u32 v14, v2, 4, v14
    v_lshlrev_b32 v{VAL}, 3, v2
    v_add_u32 v{VAL}, 8192, v{VAL}
    v_mov_b32 v8, 0x8000
    v_cmp_gt_u32 vcc, 19, v2
    v_mul_u32_u24 v9, 304, v3
    s_nop 0
    v_cndmask_b32 v8, v8, v2, vcc
    v_cmp_eq_u32 vcc, 28, v2
    s_nop 1
    v_cndmask_b32 v8, v8, 18, vcc
    v_lshl_add_u32 v15, v8, 4, v9
    v_add_u32 v{VAV}, 10240, v15
    v_mul_u32_u24 v8, {2*4608}, v3
    v_lshl_add_u32 v8, v2, 2, v8
    v_mul_u32_u24 v9, {4*4608}, v3
    v_lshl_add_u32 v9, v2, 2, v9""")
    for i in [VB+12, VB+14]: a(f"v_mov_b64 {vr(i,2)}, 0")
    srd(a, 52, 26, 1152)
    a(f"""v_lshlrev_b32 v29, 1, v2
    buffer_load_ushort v176, v29, s[52:55], s17 offen
    buffer_load_ushort v177, v29, s[52:55], s17 offen offset:64
    buffer_load_ushort v178, v29, s[52:55], s17 offen offset:128
    s_lshl_b32 s62, s57, 4
    v_xor_b32 v31, s62, v2
    v_lshrrev_b32 v28, 3, v31
    v_lshlrev_b32 v28, 5, v28
    v_bfe_u32 v29, v31, 1, 2
    v_add_u32 v28, v28, v29
    v_and_b32 v29, 1, v31
    v_lshl_add_u32 v28, v29, 4, v28
    v_mul_u32_u24 v28, 1152, v28
    v_lshl_add_u32 v189, v3, 4, v28
    s_mul_i32 s62, s57, {64*1152 - 32}
    s_sub_u32 s16, s16, s62
    s_lshl_b32 s62, s57, 4
    v_lshlrev_b32 v179, 3, v3
    v_add_u32 v179, s62, v179
    v_sub_u32 v179, v2, v179""")
    a(f"""s_lshl_b32 s50, s40, 16
    s_add_u32 s50, s50, s47
    s_add_u32 s50, s50, {OF_OFF}
    s_lshr_b32 s51, s40, 2
    s_lshl_b32 s51, s51, 15
    s_add_u32 s51, s51, s47
    s_lshl_b32 s62, s45, 2
    s_add_u32 s51, s51, s62
    s_add_u32 s51, s51, {OF_OFF + 64*GS}
    s_cmp_eq_u32 s45, 3
    s_cselect_b32 s4, 0, -1
    s_cmp_eq_u32 s45, 0
    s_cselect_b32 s5, 0, -1
    s_cmp_eq_u32 s45, 1
    s_cselect_b32 s6, 0, -1
    s_mov_b32 s7, -1
    s_cmp_eq_u32 s45, 2
    s_mov_b32 s8, -1
    s_cselect_b32 s9, 0, -1""")

def gen_attn(a):
    def toff(t, per): return (t // 8) * UNIT + (t % 8) * per
    def rdK(t, buf): return f"ds_read_b128 {vr(KM+4*buf,4)}, v{VAK} offset:{toff(t,1024)}"
    def rdL(t, buf): return f"ds_read_b64 {vr(KL+2*buf,2)}, v{VAL} offset:{toff(t,256)}"
    def rdV(t, m, buf): return f"ds_read_b128 {vr(VB+8*buf+4*m,4)}, v{VAV} offset:{toff(t,1216)+608*m}"
    def qk_a(buf): return mf(S0+32*buf, KM+4*buf, QM, "0")
    def qk_b(buf): return mf(S0+32*buf+16, KM+4*buf, QM+4, "0")
    def qk_l(buf): return f"v_mfma_f32_32x32x4_2b_bf16 {vr(S0+32*buf,32)}, {vr(KL+2*buf,2)}, {vr(QL,2)}, {vr(S0+32*buf,32)}"
    def pv(q, m, buf): return mf(OA+16*q, VB+8*buf+4*m, P0+8*q+4*m)
    def H(k, buf):
        b = S0 + 32*buf + 4*k
        for i in range(4): a(f"v_exp_f32 v{b+i}, v{b+i}")
        a(f"v_cvt_pk_bf16_f32 v{P0+2*k}, v{b}, v{b+1}\nv_cvt_pk_bf16_f32 v{P0+2*k+1}, v{b+2}, v{b+3}")
    a(rdK(0, 0)); a(rdL(0, 0)); a(rdK(1, 1)); a(rdL(1, 1)); a(rdV(0, 0, 0)); a(rdV(0, 1, 0))
    a("s_waitcnt lgkmcnt(4)")
    a(qk_a(0)); a(qk_b(0)); a("s_nop 9"); a(qk_l(0)); a("s_nop 15\ns_nop 3")
    a(".p2align 6\nL_at_loop:")
    barmask = 0x53
    for j in range(8):
        b = j & 1; nb = b ^ 1
        H(0, b); a(pv(1, 1, nb)); a("s_waitcnt lgkmcnt(0)")
        H(1, b); a(qk_a(nb)); a(rdV(j+1, 0, nb))
        H(2, b); a(qk_b(nb)); a(rdV(j+1, 1, nb))
        H(3, b); a(pv(0, 0, b)); a(rdK(j+2, b))
        H(4, b); a(qk_l(nb))
        H(5, b)
        H(6, b); a(pv(0, 1, b)); a(rdL(j+2, b))
        H(7, b); a(pv(1, 0, b))
        if j == 4: a(f"s_bitcmp1_b32 {barmask}, s60")
        if j == 5: a("s_cbranch_scc1 L_at_evt\nL_at_nobar:")
        if j == 6: a("s_add_u32 s60, s60, 1")
        if j == 7:
            a("s_cmp_lt_u32 s60, 8")
            for r in (VAK, VAL, VAV): a(f"v_add_u32 v{r}, {UNIT}, v{r}")
            a("s_cbranch_scc1 L_at_loop")
    a(pv(1, 1, 1))
    a("s_mov_b32 s61, 0")
    stamp(a, 8)
    a("L_at_fin:")
    a("s_nop 15\ns_nop 3\nv_cmp_eq_u32 vcc, 0, v3\ns_nop 1")
    for q in range(2):
        a(f"v_cndmask_b32 v{80+q}, v{OA+16*q+12}, v{OA+16*q+10}, vcc")
    a("s_cmp_lg_u32 s61, 0\ns_cbranch_scc1 L_at_store")
    a("v_min_f32 v82, v80, v81\nv_add_f32 v84, v80, v81\nv_mov_b32 v83, v84")
    for q in range(2):
        o = OA + 16*q
        for i in range(10):
            a(f"v_add_f32 v83, abs(v{o+i}), v83")
    a(f"""v_cmp_le_f32 vcc, {hex(f2u(2.0**-60))}, v82
    s_mov_b64 s[62:63], vcc
    v_cmp_ge_f32 vcc, {hex(f2u(2.0**60))}, v84
    s_and_b64 s[62:63], s[62:63], vcc
    v_cmp_ge_f32 vcc, {hex(f2u(2.0**120))}, v83
    s_and_b64 s[62:63], s[62:63], vcc
    s_cmp_eq_u64 s[62:63], exec
    s_cbranch_scc0 L_at_slow""")
    a("L_at_store:")
    for q in range(2):
        o = OA + 16*q
        a(f"v_rcp_f32 v{80+q}, v{80+q}\ns_nop 0")
        for i in range(10): a(f"v_mul_f32 v{o+i}, v{o+i}, v{80+q}")
        for i in range(5): a(f"v_cvt_pk_bf16_f32 v{P0+8*q+i}, v{o+2*i}, v{o+2*i+1}")
        a(f"buffer_store_dwordx4 {vr(P0+8*q,4)}, v13, {WS}, s50 offen offset:{512*q} {SC}")
        a(f"buffer_store_dword v{P0+8*q+4}, v14, {WS}, s51 offen offset:{512*q} {SC}")
    a("s_setprio 0\ns_branch L_c_p3")
    a("L_at_evt:\ns_cmp_lt_u32 s60, 2\ns_cbranch_scc1 L_at_e01")
    a(f"""s_lshl_b32 s62, s60, 2
    s_add_u32 s62, s62, {FLB + 4}
    s_mov_b64 exec, 1
    v_mov_b32 v24, s62
    v_mov_b32 v25, 1
    ds_add_u32 v24, v25
    s_mov_b64 exec, -1""")
    a("s_branch L_at_nobar\nL_at_e01:\ns_cmp_eq_u32 s60, 0\ns_cbranch_scc0 L_at_e1\ns_waitcnt vmcnt(0)")
    a(f"""s_mov_b64 exec, 1
    v_mov_b32 v24, {FLB+16}
    v_mov_b32 v25, 1
    ds_add_rtn_u32 v25, v24, v25
    s_waitcnt lgkmcnt(0)
    v_readfirstlane_b32 s62, v25
    s_mov_b64 exec, -1
    s_cmp_eq_u32 s62, 3
    s_cbranch_scc0 L_at_nobar""")
    post_strided(a, 32 >> USH, "s18")
    a("s_branch L_at_nobar\nL_at_e1:")
    if BARSTAMP: stamp(a, 1)
    a(f"""L_at_e1l:
    v_mov_b32 v24, {FLB}
    ds_read_b128 v[24:27], v24
    s_waitcnt lgkmcnt(0)
    v_and_b32 v24, v24, v25
    v_and_b32 v26, v26, v27
    v_and_b32 v24, v24, v26
    s_nop 0
    v_readfirstlane_b32 s62, v24
    s_cmp_eq_u32 s62, 0
    s_cbranch_scc1 L_at_e1l""")
    if BARSTAMP: stamp(a, 2)
    a("s_branch L_at_nobar")
    a("L_at_slow:")
    a(f"""v_lshlrev_b32 v85, 4, v2
    v_lshlrev_b32 v86, 4, v3
    v_lshl_add_u32 v86, v2, 5, v86
    v_cmp_gt_u32 vcc, 18, v2
    v_mov_b32 v87, {OOB}
    v_mov_b32 v88, 0x3f803f80
    v_cndmask_b32 v86, v87, v86, vcc
    v_cndmask_b32 v88, v88, 0, vcc""")
    def reset():
        a(f"""s_lshl_b32 s62, s43, 15
        s_add_u32 s62, s62, {KF_OFF}
        s_add_u32 s63, s44, {KF_OFF}
        s_mul_i32 s64, s40, 576
        s_add_u32 s64, s64, {VF_OFF}
        s_mov_b32 s60, 0""")
    def qk_plain():
        a(f"""buffer_load_dwordx4 {vr(KM,4)}, v13, {WS}, s62 offen {SC}
        buffer_load_dwordx2 {vr(KL,2)}, v85, {WS}, s63 offen {SC}
        s_waitcnt vmcnt(0)""")
        a(qk_a(0)); a(qk_b(0)); a("s_nop 9"); a(qk_l(0)); a("s_nop 15\ns_nop 3")
    def adv(lab):
        a(f"""s_add_u32 s62, s62, 512
        s_add_u32 s63, s63, 512
        s_add_u32 s64, s64, {4*VG}
        s_add_u32 s60, s60, 1
        s_cmp_lt_u32 s60, 64
        s_cbranch_scc1 {lab}""")
    reset()
    a("v_mov_b32 v82, 0xff800000\nv_mov_b32 v83, 0xff800000\nL_at_slowa:")
    qk_plain()
    for q in range(2):
        for i in range(0, 16, 2):
            a(f"v_max3_f32 v{82+q}, v{S0+16*q+i}, v{S0+16*q+i+1}, v{82+q}")
    adv("L_at_slowa")
    a("""v_xor_b32 v84, 32, v1
    v_lshlrev_b32 v84, 2, v84
    ds_bpermute_b32 v80, v84, v82
    ds_bpermute_b32 v81, v84, v83
    s_waitcnt lgkmcnt(0)
    v_max_f32 v82, v82, v80
    v_max_f32 v83, v83, v81""")
    reset()
    for i in range(32): a(f"v_mov_b32 v{OA+i}, 0")
    a("L_at_slowb:")
    a(f"""buffer_load_dwordx4 {vr(VB,4)}, v86, {WS}, s64 offen {SC}
    s_add_u32 s65, s64, {2*VG}
    buffer_load_dwordx4 {vr(VB+4,4)}, v86, {WS}, s65 offen {SC}""")
    qk_plain()
    for i in range(8): a(f"v_or_b32 v{VB+i}, v{VB+i}, v88")
    for q in range(2):
        for i in range(16): a(f"v_sub_f32 v{S0+16*q+i}, v{S0+16*q+i}, v{82+q}")
    for k in range(8): H(k, 0)
    a("s_nop 1")
    for q in range(2):
        for m in range(2): a(pv(q, m, 0))
    a("s_nop 7")
    adv("L_at_slowb")
    a("s_mov_b32 s61, 1\ns_branch L_at_fin")

def gen_p3_comp(a):
    a("""L_c_p3:
    s_cmp_ge_u32 s35, 24
    s_cbranch_scc0 L_c_p3go
    s_waitcnt vmcnt(0)""")
    post_strided(a, 6, "s14")
    endk(a)
    a("L_c_p3go:")
    for c in range(3): a(mf(ACC3 + 16*c, XF + 4*c, [16, 20, 28][c], "0"))
    if POSTAT < 0:
        a("s_waitcnt vmcnt(0)")
        post_strided(a, 6, "s14")
    a("s_barrier")
    stamp(a, 9)
    srd(a, 40, 28, 2048*4608)
    def fr(buf, k): return F3 + 16*buf + 4*k
    def hook(i):
        if P3STAMP == 3: stamp(a, i + 1)
        if i == POSTAT:
            if P3STAMP == 4: stamp(a, 1)
            a("s_waitcnt vmcnt(0)")
            if P3STAMP == 4: stamp(a, 2)
            post_strided(a, 6, "s14")
        if P3STAMP == 4 and i in (2, 4, 5): stamp(a, {2: 3, 4: 4, 5: 5}[i])
        if P3STAMP == 4 and i == 6: stamp(a, 6)
        if i == FLAGAT - 2:
            a(f"""s_cmp_lg_u32 s3, 0
            s_cbranch_scc1 L_c_nopoll
            v_lshlrev_b32 v26, 2, v2
            buffer_load_dword v23, v26, {WS}, s15 offen sc1
            L_c_nopoll:""")
        if i == FLAGAT - 1:
            a("""s_cmp_lg_u32 s3, 0
            s_cbranch_scc1 L_c_oflag
            s_waitcnt vmcnt(0)
            v_cmp_eq_u32 vcc, s94, v23
            s_cmp_eq_u64 vcc, exec
            s_cbranch_scc1 L_c_oflag""")
            poll(a, "s15", 32, cnt="s68")
            a("L_c_oflag:")
    def reads_c(s, buf):
        return [(rdtr(fr(buf, 0), ADR3 + 4, (16*s)*128), 0), (rdtr(fr(buf, 0) + 2, ADR3 + 4, (16*s+4)*128), 0)] + \
               [(rd128(fr(buf, 1 + c), ADR3 + s, 4096*c), 1 + c) for c in range(3)]
    def adv_c(i):
        if P3STAMP == 2: stamp(a, i)
        for k in range(5): a(f"v_add_u32 v{ADR3+k}, {((SEQC[i]-SEQC[i-1])*SLOT) & 0xffffffff}, v{ADR3+k}")
    chunk_seq(a, 9, adv_c, reads_c, lambda buf, first: [(mf(ACC3 + 16*c, fr(buf, 0), fr(buf, 1 + c)), [0, 1+c]) for c in range(3)], 3, hook=hook)
    if P3STAMP == 1: stamp(a, 1)
    def exchange(accb, first):
        for c in range(3):
            for q in range(2):
                a(f"ds_write_b128 v6, {vr(accb+16*c+8+4*q,4)} offset:{(2*c+q)*1024 + (SLOT if first else 0)}")
        a("s_waitcnt lgkmcnt(0)\ns_barrier")
        if P3STAMP == 1: stamp(a, 2 if first else 5)
        for c in range(3):
            for q in range(2):
                a(f"ds_read_b128 {vr(accb+16*c+8+4*q,4)}, v7 offset:{(2*c+q)*1024 + (SLOT if first else 0)}")
        for c in range(3):
            for q in range(2):
                a(f"s_waitcnt lgkmcnt({5-2*c-q})")
                for r in range(4*q, 4*q+4, 2):
                    a(f"v_pk_add_f32 {vr(accb+16*c+r,2)}, {vr(accb+16*c+r,2)}, {vr(accb+16*c+8+r,2)}")
    def stores(accb, sbase, vo, rowoff):
        out = []
        for r in range(8):
            for c in range(3):
                out.append((f"s_add_u32 s63, {sbase}, {rowoff(r)*4608}\n" if c == 0 else "") + f"buffer_store_dword v{accb+16*c+r}, v{vo}, s[40:43], s63 offen offset:{128*c} {OUTSC}")
        return out
    exchange(ACC3, True)
    stamp(a, 10)
    for x in stores(ACC3, "s12", 8, lambda r: 32*(r>>2) + ((r&3)>>1) + 16*(r&1)): a(x)
    endk(a)

def gen_prefetch(a):
    a("""s_lshl_b32 s60, s35, 2
    s_add_u32 s60, s60, s69
    s_lshl_b32 s60, s60, 13""")
    srd(a, 44, 8, 576*1152)
    a("buffer_load_dword v14, v255, s[44:47], s60 offen")
    a(f"s_lshr_b32 s61, s34, 2\ns_mul_i32 s61, s61, {288*1152}\ns_add_u32 s62, s61, {288*1152}\ns_add_u32 s61, s61, s60")
    srd(a, 48, 20, "s62")
    a("buffer_load_dword v14, v255, s[48:51], s61 offen")
    srd(a, 44, 22, "s62")
    a("buffer_load_dword v14, v255, s[44:47], s61 offen")
    a(f"s_and_b32 s61, s34, 3\ns_mul_i32 s61, s61, {512*1152}\ns_add_u32 s62, s61, {512*1152}\ns_add_u32 s61, s61, s60")
    srd(a, 48, 10, "s62")
    a("buffer_load_dword v14, v255, s[48:51], s61 offen")

UR = 64; XR = 96; XI = 128
KC = 160
def gen_scan_pre(a, part):
    if part == 0:
        a("""s_lshl_b32 s64, s69, 5
        s_add_u32 s64, s64, s35
        s_mul_i32 s65, s34, 72
        s_add_u32 s65, s65, s64
        s_cmp_ge_u32 s64, 72
        s_cselect_b32 s95, 576, s65
        s_cselect_b32 s65, 0, s65
        s_lshl_b32 s64, s65, 1
        s_and_b32 s64, s64, -4
        s_load_dword s4, s[12:13], s64
        s_load_dword s5, s[14:15], s64
        s_load_dword s6, s[24:25], s64""")
        return
    L, I, CR, CI = KC, KC+2, KC+4, KC+6
    a(f"""s_and_b32 s64, s95, 1
    s_lshl_b32 s64, s64, 4
    s_waitcnt lgkmcnt(0)
    s_lshr_b32 s4, s4, s64
    s_lshr_b32 s5, s5, s64
    s_lshr_b32 s6, s6, s64
    v_lshlrev_b32 v5, 16, s4
    v_lshlrev_b32 v6, 16, s5
    v_lshlrev_b32 v7, 16, s6
    v_mul_f32 v7, {hex(f2u(LOG2E))}, v7
    v_exp_f32 v7, v7
    s_nop 0
    v_cvt_pk_bf16_f32 v7, v7, v7
    v_and_b32 v7, 0xffff0000, v7
    v_mul_f32 v28, v7, v5
    v_mul_f32 v29, v7, v6
    v_mul_f32 v28, {hex(f2u(LOG2E))}, v28
    v_exp_f32 v28, v28
    v_mul_f32 v29, 0.15915494309189535, v29
    v_fract_f32 v29, v29
    v_cos_f32 v30, v29
    v_sin_f32 v31, v29
    s_nop 0
    v_mul_f32 v{L}, v28, v30
    v_mul_f32 v{I}, v28, v31
    v_add_f32 v30, -1.0, v{L}
    v_mul_f32 v28, v5, v5
    v_fma_f32 v28, v6, v6, v28
    v_rcp_f32 v28, v28
    v_mul_f32 v{CR}, v30, v5
    v_fma_f32 v{CR}, v{I}, v6, v{CR}
    v_mul_f32 v{CI}, v{I}, v5
    v_fma_f32 v{CI}, -v30, v6, v{CI}
    v_add_f32 v28, v28, v28
    v_mul_f32 v{CR}, v{CR}, v28
    v_mul_f32 v{CI}, v{CI}, v28
    v_sub_f32 v{I}, 0, v{I}
    v_mov_b32 v{L+1}, v{L}
    v_mov_b32 v{I+1}, v{I}
    v_mov_b32 v{CR+1}, v{CR}
    v_mov_b32 v{CI+1}, v{CI}""")
    def csq(dr, di, sr_, si):
        a(f"""v_mul_f32 v28, v{si}, v{si}
        v_mul_f32 v{di}, v{sr_}, v{si}
        v_fma_f32 v{dr}, v{sr_}, v{sr_}, -v28
        v_add_f32 v{di}, v{di}, v{di}""")
    csq(KC+8, KC+9, L, I)
    for _ in range(3): csq(KC+8, KC+9, KC+8, KC+9)
    for k in range(6): csq(KC+10+2*k, KC+11+2*k, KC+8+2*k, KC+9+2*k)
    a(f"""v_lshlrev_b32 v{KC+22}, 2, v1
    s_mov_b32 s64, 73728
    v_mul_lo_u32 v39, v1, s64""")

def gen_scan_load(a, attempt):
    a(f"""s_mov_b32 s68, 0
    s_cmp_ge_u32 s95, 576
    s_cbranch_scc1 {"L_h_try" if attempt else "L_h_scand"}
    s_mul_i32 s61, s95, 683
    s_lshr_b32 s61, s61, 16
    s_lshl_b32 s61, s61, 5
    s_lshr_b32 s62, s35, {USH}
    s_add_u32 s61, s61, s62
    s_lshl_b32 s61, s61, 7
    s_add_u32 s61, s61, {MB_U}""")
    poll(a, "s61", 32, t=40, slp=SLP)
    if SCSTAMP: stamp(a, 1)
    if attempt: a("s_cmp_eq_u32 s68, 0\ns_cbranch_scc1 L_h_try")
    a(f"s_lshl_b32 s61, s95, 4\ns_add_u32 s61, s61, {UF_OFF}")
    for q in range(8):
        a(f"s_add_u32 s62, s61, {9216*q}\nbuffer_load_dwordx4 {vr(UR+4*q,4)}, v39, {WS}, s62 offen {SC}")

def gen_scan(a):
    L, I, CR, CI, P16, AD = KC, KC+2, KC+4, KC+6, KC+8, KC+22
    if SCSTAMP: stamp(a, 2)
    a("s_waitcnt vmcnt(0)")
    if SCSTAMP: stamp(a, 3)
    def pk(d, x, y, z=None, neg=""):
        if z is None: a(f"v_pk_mul_f32 {vr(d,2)}, {vr(x,2)}, {vr(y,2)} {neg}")
        else: a(f"v_pk_fma_f32 {vr(d,2)}, {vr(x,2)}, {vr(y,2)}, {vr(z,2)} {neg}")
    NEG0 = "neg_lo:[1,0,0] neg_hi:[1,0,0]"
    for D in range(16):
        a(f"""v_lshlrev_b32 v24, 16, v{UR+D}
        v_and_b32 v25, 0xffff0000, v{UR+D}
        v_lshlrev_b32 v26, 16, v{UR+16+D}
        v_and_b32 v27, 0xffff0000, v{UR+16+D}""")
        pk(XR+2*D, CR, 24)
        pk(XI+2*D, CR, 26, None, "neg_lo:[1,0] neg_hi:[1,0]")
        pk(XR+2*D, CI, 26, XR+2*D, NEG0)
        pk(XI+2*D, CI, 24, XI+2*D, NEG0)
    def step(er, ei, nr, ni, D):
        pk(nr, L, er, XR+2*D)
        pk(ni, L, ei, XI+2*D)
        pk(nr, I, ei, nr, NEG0)
        pk(ni, I, er, ni)
    cur = (XR, XI)
    for D in range(1, 16):
        nx = (24, 26) if D & 1 else (28, 30)
        step(cur[0], cur[1], nx[0], nx[1], D); cur = nx
    def cmac(dr, di, pr, pi, xr, xi, ar, ai):
        a(f"""v_fma_f32 v{dr}, v{pr}, v{xr}, v{ar}
        v_fma_f32 v{di}, v{pr}, v{xi}, v{ai}
        v_fma_f32 v{dr}, -v{pi}, v{xi}, v{dr}
        v_fma_f32 v{di}, v{pi}, v{xr}, v{di}""")
    cmac(28, 29, P16, P16+1, 24, 26, 25, 27)
    for k in range(6):
        d = 1 << k
        a(f"""ds_bpermute_b32 v30, v{AD}, v28 offset:{256-4*d}
        ds_bpermute_b32 v31, v{AD}, v29 offset:{256-4*d}
        s_mov_b32 exec_lo, {hex((~((1 << d) - 1)) & 0xffffffff)}
        s_waitcnt lgkmcnt(0)""")
        cmac(28, 29, KC+10+2*k, KC+11+2*k, 30, 31, 28, 29)
        a("s_mov_b32 exec_lo, -1")
    a(f"""ds_bpermute_b32 v22, v{AD}, v28 offset:252
    ds_bpermute_b32 v30, v{AD}, v29 offset:252
    s_waitcnt lgkmcnt(0)
    v_mov_b32 v28, v22
    s_mov_b64 exec, 1
    v_mov_b32 v28, 0
    v_mov_b32 v30, 0
    s_mov_b64 exec, -1""")
    cmac(29, 31, P16, P16+1, 28, 30, 24, 26)
    cur = (28, 30)
    for D in range(16):
        step(cur[0], cur[1], XR+2*D, XI+2*D, D); cur = (XR+2*D, XI+2*D)
        a(f"v_cvt_pk_bf16_f32 v{UR+D}, v{XR+2*D}, v{XR+2*D+1}\nv_cvt_pk_bf16_f32 v{UR+16+D}, v{XI+2*D}, v{XI+2*D+1}")
    if SCSTAMP: stamp(a, 4)
    a(f"""s_lshl_b32 s61, s95, 12
    s_add_u32 s61, s61, {HT_OFF}
    s_add_u32 s62, s61, {576*4096}""")
    for q in range(4): a(f"buffer_store_dwordx4 {vr(UR+4*q,4)}, v33, {WS}, s61 offen offset:{1024*q} {SC}")
    for q in range(4): a(f"buffer_store_dwordx4 {vr(UR+16+4*q,4)}, v33, {WS}, s62 offen offset:{1024*q} {SC}")
    a(f"""s_mul_i32 s61, s34, {384 - 288}
    s_lshl_b32 s62, s95, 2
    s_add_u32 s61, s61, s62
    s_add_u32 s61, s61, {MB_S}
    s_waitcnt vmcnt(0)""")
    post_strided(a, 1, "s61", t=40)
```
